```python
import torch

def _softmax(x, axis=-1):
    return torch.softmax(x, dim=axis)
def _gelu(x):
    return torch.nn.functional.gelu(x, approximate="tanh")
def _silu(x):
    return torch.nn.functional.silu(x)
def _sigmoid(x):
    return torch.sigmoid(x)
def _layernorm(x, axis=-1, eps=1e-5):
    m = x.mean(dim=axis, keepdim=True)
    v = x.var(dim=axis, keepdim=True, unbiased=False)
    return (x - m) / torch.sqrt(v + eps)
def _scatter_add(tgt, idx, src, axis=0):
    return tgt.clone().index_add_(axis, idx, src)
def _segment_sum(src, seg, n):
    out = torch.zeros((n,) + src.shape[1:], dtype=src.dtype)
    return out.index_add_(0, seg, src)
def _pad(x, pw):
    flat = tuple(v for pair in reversed(pw) for v in pair)
    return torch.nn.functional.pad(x, flat)

kernel_name = 'sequential_preLN__sliding_block_cached__dense_activation_silu__decode'

def setup_inputs():

    _w = (lambda a: (lambda t: t.to(torch.bfloat16) if t.is_floating_point() else t)(torch.as_tensor(a)))
    def _A_setup():
        B, Sq, D = 2, 1, 512
        Hq, Hkv, Sk, Dh = 32, 8, 8192, 128
        assert Hq % Hkv == 0, (Hq, Hkv)
        return {
            "x": _w((lambda *s: torch.randn(*s, dtype=torch.bfloat16) * 0.05)(B, Sq, D)),
            "k_cache": _w((lambda *s: torch.randn(*s, dtype=torch.bfloat16) * 3.2)(B, Hkv, Sk, Dh)),
            "v_cache": _w((lambda *s: torch.randn(*s, dtype=torch.bfloat16) * 0.8)(B, Hkv, Sk, Dh)),
            "wq": _w((lambda *s: torch.randn(*s, dtype=torch.bfloat16) * 3.2)(D, Hq * Dh) * (D ** -0.5)),
            "wo": _w((lambda *s: torch.randn(*s, dtype=torch.bfloat16) * 0.8)(Hq * Dh, D) * ((Hq * Dh) ** -0.5)),
        }
    _A_in = _A_setup()

    def _B_setup():
        B, S, D, F = 2, 1, 512, 1792
        return {
            "x": _w((lambda *s: torch.randn(*s, dtype=torch.bfloat16) * 0.05)(B, S, D)),
            "w1": _w((lambda *s: torch.randn(*s, dtype=torch.bfloat16) * 3.2)(D, F) * (D ** -0.5)),
            "w2": _w((lambda *s: torch.randn(*s, dtype=torch.bfloat16) * 0.4)(F, D) * (F ** -0.5)),
        }
    _B_in = _B_setup()

    return {
        "A_x": _A_in["x"],
        "A_k_cache": _A_in["k_cache"],
        "A_v_cache": _A_in["v_cache"],
        "A_wq": _A_in["wq"],
        "A_wo": _A_in["wo"],
        "B_x": _B_in["x"],
        "B_w1": _B_in["w1"],
        "B_w2": _B_in["w2"],
    }

def reference(A_x, A_k_cache, A_v_cache, A_wq, A_wo, B_x, B_w1, B_w2):
    def _A_ref(x, k_cache, v_cache, wq, wo):
        B, Sq, D = x.shape
        Hq, Dh = 32, 128
        Hkv, Sk = k_cache.shape[1], k_cache.shape[2]
        W = min(4096, max(256, Sk // 4))
        rep = Hq // Hkv
        q = (lambda x, *d: x.permute(*d))((x @ wq).reshape(B, Sq, Hq, Dh), 0, 2, 1, 3)
        k = (lambda x, n, axis: torch.repeat_interleave(x, n, dim=axis))(k_cache[:, :, Sk - W:, :], rep, axis=1)
        v = (lambda x, n, axis: torch.repeat_interleave(x, n, dim=axis))(v_cache[:, :, Sk - W:, :], rep, axis=1)
        scores = torch.einsum("bhqd,bhkd->bhqk", q, k) * (Dh ** -0.5)
        p = _softmax(scores, axis=-1)
        o = torch.einsum("bhqk,bhkd->bhqd", p, v)
        return (lambda x, *d: x.permute(*d))(o, 0, 2, 1, 3).reshape(B, Sq, Hq * Dh) @ wo

    def _B_ref(x, w1, w2):
        h = torch.einsum("bsd,df->bsf", x, w1)
        h = _silu(h)
        out = torch.einsum("bsf,fd->bsd", h, w2)
        return out

    x = A_x
    h = x + _A_ref(_layernorm(x, axis=-1), A_k_cache, A_v_cache, A_wq, A_wo)
    h2 = h + _B_ref(_layernorm(h, axis=-1), B_w1, B_w2)
    return h2
```

```python
import re

TRANS = ("v_exp_f32", "v_log_f32", "v_rcp_f32", "v_rsq_f32", "v_sqrt_f32", "v_sin_f32", "v_cos_f32")


def regs_of(tok):
    tok = tok.strip()
    tok = tok.lstrip("-")
    m = re.fullmatch(r"abs\((.*)\)", tok)
    if m:
        tok = m.group(1)
    m = re.fullmatch(r"\|(.*)\|", tok)
    if m:
        tok = m.group(1)
    m = re.fullmatch(r"([vsa])(\d+)", tok)
    if m:
        return {(m.group(1), int(m.group(2)))}
    m = re.fullmatch(r"([vsa])\[(\d+):(\d+)\]", tok)
    if m:
        return {(m.group(1), i) for i in range(int(m.group(2)), int(m.group(3)) + 1)}
    if tok in ("vcc", "vcc_lo", "vcc_hi"):
        return {("vcc", 0)}
    if tok in ("exec", "exec_lo", "exec_hi"):
        return {("exec", 0)}
    if tok == "m0":
        return {("m0", 0)}
    return set()


def split_ops(s):
    out, depth, cur = [], 0, ""
    for ch in s:
        if ch in "[(":
            depth += 1
        if ch in "])":
            depth -= 1
        if ch == "," and depth == 0:
            out.append(cur)
            cur = ""
        else:
            cur += ch
    if cur.strip():
        out.append(cur)
    return [o.strip() for o in out]


class Ins:
    def __init__(self, text):
        self.text = text
        t = text.split(";")[0].strip()
        self.label = t.endswith(":")
        self.directive = t.startswith(".")
        self.op = ""
        self.w = set()
        self.r = set()
        self.kind = "other"
        self.srcC = set()
        self.srcAB = set()
        if not t or self.label or self.directive:
            self.kind = "none"
            return
        parts = t.split(None, 1)
        self.op = parts[0]
        rest = parts[1] if len(parts) > 1 else ""
        ops = split_ops(rest)
        clean = []
        mods = ""
        for o in ops:
            sp = o.split()
            clean.append(sp[0] if sp else "")
            mods += " " + " ".join(sp[1:])
        self.mods = mods
        ops = clean
        op = self.op
        R = [regs_of(o) for o in ops]
        allr = set().union(*R) if R else set()
        if op.startswith("v_mfma"):
            self.kind = "mfma"
            self.w = R[0]
            self.srcAB = R[1] | R[2]
            self.srcC = R[3] if len(R) > 3 else set()
            self.r = self.srcAB | self.srcC
        elif op.startswith("v_permlane") and "swap" in op:
            self.kind = "valu"
            self.w = R[0] | R[1]
            self.r = R[0] | R[1]
            self.perm = True
        elif op.startswith("v_"):
            self.kind = "valu"
            self.w = R[0]
            self.r = set().union(*R[1:]) if len(R) > 1 else set()
            if op.startswith(("v_fmac", "v_pk_fmac", "v_dot2c")):
                self.r |= R[0]
            if op.startswith(("v_add_co", "v_sub_co", "v_addc_co", "v_subb_co")):
                self.w |= R[1]
            if op.startswith("v_cndmask") and len(ops) == 3:
                self.r |= {("vcc", 0)}
            if op.startswith("v_cmpx"):
                self.w |= {("exec", 0)}
        elif op.startswith(("buffer_load", "global_load")):
            self.kind = "vmem"
            if " lds" in (" " + mods + " ") or "_lds_" in op:
                self.r = allr | {("m0", 0)}
                self.ldsdma = True
            else:
                self.w = R[0]
                self.r = set().union(*R[1:])
        elif op.startswith(("buffer_store", "global_store", "buffer_atomic", "global_atomic")):
            self.kind = "vmem"
            self.r = allr
            if op.startswith("buffer_"):
                self.sdata = R[0]
            else:
                self.sdata = R[1]
            self.wide = op.endswith(("x3", "x4"))
        elif op.startswith("ds_read") or op.startswith(("ds_bpermute", "ds_permute", "ds_swizzle")):
            self.kind = "ds"
            self.w = R[0]
            self.r = set().union(*R[1:])
        elif op.startswith("ds_"):
            self.kind = "ds"
            self.r = allr
        elif op.startswith("s_"):
            self.kind = "salu"
            if op.startswith(("s_cmp", "s_cbranch", "s_branch", "s_waitcnt", "s_nop", "s_barrier", "s_endpgm",
                              "s_sleep", "s_setprio")):
                self.r = allr
            else:
                self.w = R[0] if R else set()
                self.r = set().union(*R[1:]) if len(R) > 1 else set()
                if "saveexec" in op:
                    self.w |= {("exec", 0)}
        self.is_dpp = "_dpp" in op or "row_" in getattr(self, "mods", "") or "quad_perm" in getattr(self, "mods", "")
        self.is_trans = op.replace("_e32", "").replace("_e64", "") in TRANS

    def states(self):
        if self.kind == "none":
            return 0
        if self.op == "s_nop":
            return int(self.text.split(";")[0].split()[1], 0) + 1
        return 1


def isv(s):
    return {x for x in s if x[0] in ("v", "a")}


def iss(s):
    return {x for x in s if x[0] in ("s", "vcc")}


def need(prod, cons):
    n = 0
    pv = isv(prod.w)
    ps = iss(prod.w)
    if prod.kind == "valu":
        if cons.kind == "mfma" and pv & cons.r:
            n = max(n, 2)
        if cons.kind == "valu" and (getattr(cons, "perm", False) or cons.is_dpp) and pv & cons.r:
            n = max(n, 2)
        if prod.is_trans and cons.kind in ("valu", "mfma") and not cons.is_trans and pv & cons.r:
            n = max(n, 1)
        if prod.is_trans and cons.kind in ("vmem", "ds") and pv & cons.r:
            n = max(n, 1)
        if cons.op.startswith(("v_readlane", "v_readfirstlane")) and pv & cons.r:
            n = max(n, 1)
        if ps:
            if cons.kind == "valu" and ps & cons.r:
                n = max(n, 4 if cons.op.startswith(("v_readlane", "v_writelane")) else 2)
            if cons.kind == "vmem" and ps & cons.r:
                n = max(n, 5)
            if cons.kind == "salu" and ps & cons.r:
                n = max(n, 1)
        if ("exec", 0) in prod.w:
            n = max(n, 5)
    if prod.kind == "mfma":
        d = prod.w
        passes = 4
        if "32x32x16" in prod.op or "32x32x8" in prod.op:
            passes = 8
        t_c = {4: 6, 8: 10}[passes]
        t_ab = {4: 8, 8: 12}[passes]
        t_war = {4: 3, 8: 7}[passes]
        if cons.kind == "mfma":
            if d & cons.srcAB:
                n = max(n, t_ab)
            if d & cons.srcC and d != cons.srcC:
                n = max(n, t_c)
            if d & cons.w and d != cons.srcC:
                n = max(n, t_ab)
        elif cons.kind in ("valu", "vmem", "ds"):
            if d & (cons.r | cons.w):
                n = max(n, t_ab)
        if cons.kind in ("valu",) and prod.srcC & cons.w:
            n = max(n, t_war)
    if prod.kind == "salu" and ("m0", 0) in prod.w and getattr(cons, "ldsdma", False):
        n = max(n, 1)
    if prod.kind == "vmem" and getattr(prod, "wide", False):
        if prod.sdata & cons.w:
            n = max(n, 2)
    return n


def pad(lines):
    out = []
    hist = []
    pos = 0
    for text in lines:
        ins = Ins(text)
        if ins.kind == "none":
            out.append(text)
            continue
        req = 0
        for p, ppos in hist[-24:]:
            n = need(p, ins)
            if n:
                dist = pos - ppos
                req = max(req, n - dist)
        while req > 0:
            k = min(req, 16)
            out.append(f"    s_nop {k - 1}")
            pos += k
            req -= k
        out.append(text)
        st = ins.states()
        pos += st
        hist.append((ins, pos))
    return out


class Asm:
    def __init__(self):
        self.lines = []

    def __call__(self, s):
        for l in s.strip("\n").split("\n"):
            l = l.strip()
            if not l:
                continue
            if l.endswith(":") or l.startswith("."):
                self.lines.append(l)
            else:
                self.lines.append("    " + l)

    def label(self, name):
        self.lines.append(name + ":")

    def text(self):
        return "\n".join(pad(self.lines)) + "\n"
```

```python
import sys
import struct
from asmlib import Asm

NAME = "sequential_preLN__sliding_block_cached__dense_activation_silu__decode"
STAMPS = "--stamps" in sys.argv
OUT = "cdna_kernels/%s.s" % NAME
for a in sys.argv[1:]:
    if a.startswith("--out="):
        OUT = a[6:]

Q_OFF = 4096
P_OFF = Q_OFF + 32768
ML_OFF = P_OFF + 262144
A_OFF = ML_OFF + 8192
F_OFF = A_OFF + 32768
WS_END = F_OFF + 112 * 4096
ST_OFF = 1 << 20
WS_SIZE = ST_OFF + 256 * 128 if STAMPS else WS_END

POLL_LIMIT = 1 << 17

L_RED = 0
L_RED2 = L_RED + 2048
L_OB = L_RED2 + 2048
L_H = L_OB + 2048
L_RED1 = L_H + 2048
L_STG = 10240
LDS_SIZE = L_STG + 65536


def f32bits(x):
    return struct.unpack("<I", struct.pack("<f", x))[0]


LOG2E = f32bits(1.4426950408889634)
SCALE = f32bits(128 ** -0.5)
EPS = f32bits(1e-5)

sWV, sG, sSLOT, sT0, sT1, sT2, sT3 = 26, 27, 28, 29, 30, 31, 32
sITER = 33
sL2E = 34
sTMP = 35
SRD_WS, SRD_A, SRD_B, SRD_X, SRD_W1, SRD_W2, SRD_OUT = 36, 40, 44, 48, 52, 56, 60
sST = 76

A = Asm()
nstamp = [0]


def srd(n):
    return f"s[{n}:{n + 3}]"


def vr(a, n):
    return f"v[{a}:{a + n - 1}]"


def stamp(idx):
    if STAMPS:
        A(f"s_memrealtime s[{sST + 2 * idx}:{sST + 2 * idx + 1}]")


def stamp_flush(nst):
    if not STAMPS:
        return
    lab = f"L_st{nstamp[0]}"
    nstamp[0] += 1
    A(f"""
    s_waitcnt lgkmcnt(0)
    s_cmp_lg_u32 s{sWV}, 0
    s_cbranch_scc1 {lab}
    s_mov_b64 exec, 1
    s_lshl_b32 s{sTMP}, s2, 7
    s_add_u32 s{sTMP}, s{sTMP}, {ST_OFF}
    v_mov_b32 v1, 0
    """)
    for i in range(nst):
        A(f"""
        v_mov_b32 v2, s{sST + 2 * i}
        v_mov_b32 v3, s{sST + 2 * i + 1}
        buffer_store_dwordx2 v[2:3], v1, {srd(SRD_WS)}, s{sTMP} offen offset:{8 * i}
        s_nop 1
        """)
    A("s_mov_b64 exec, -1")
    A.label(lab)


def mk_srd(n, ptr, size):
    A(f"""
    s_mov_b32 s{n}, s{ptr}
    s_mov_b32 s{n + 1}, s{ptr + 1}
    s_mov_b32 s{n + 2}, {size}
    s_mov_b32 s{n + 3}, 0x00020000
    """)


def exec_mask(m32):
    A(f"""
    s_mov_b32 exec_lo, 0x{m32:08x}
    s_mov_b32 exec_hi, 0x{m32:08x}
    """)


def bf16r(dst, src, tmp=None):
    A(f"""
    v_cvt_pk_bf16_f32 v{dst}, v{src}, v{src}
    v_and_b32 v{dst}, 0xffff0000, v{dst}
    """)


def allreduce_x16(v, t, op):
    A(f"""
    v_mov_b32 v{t}, v{v}
    v_permlane16_swap_b32 v{v}, v{t}
    {op} v{v}, v{v}, v{t}
    """)


def allreduce_x32(v, t, op):
    A(f"""
    v_mov_b32 v{t}, v{v}
    v_permlane32_swap_b32 v{v}, v{t}
    {op} v{v}, v{v}, v{t}
    """)


def layernorm(raw, piv, braw, out, t):
    c = t + 16
    s1 = t + 18
    s2 = t + 20
    x = t + 22
    A(f"v_lshlrev_b32 v{c}, 16, v{piv}")
    A(f"v_mov_b32 v{c + 1}, v{c}")
    for i in range(8):
        A(f"v_lshlrev_b32 v{t + 2 * i}, 16, v{raw + i}")
        A(f"v_and_b32 v{t + 2 * i + 1}, 0xffff0000, v{raw + i}")
    for i in range(8):
        A(f"v_pk_add_f32 {vr(t + 2 * i, 2)}, {vr(t + 2 * i, 2)}, {vr(c, 2)} neg_lo:[0,1] neg_hi:[0,1]")
    A(f"v_pk_add_f32 {vr(s1, 2)}, {vr(t, 2)}, {vr(t + 2, 2)}")
    A(f"v_pk_mul_f32 {vr(s2, 2)}, {vr(t, 2)}, {vr(t, 2)}")
    A(f"v_pk_fma_f32 {vr(s2, 2)}, {vr(t + 2, 2)}, {vr(t + 2, 2)}, {vr(s2, 2)}")
    for i in range(2, 8):
        A(f"v_pk_add_f32 {vr(s1, 2)}, {vr(s1, 2)}, {vr(t + 2 * i, 2)}")
        A(f"v_pk_fma_f32 {vr(s2, 2)}, {vr(t + 2 * i, 2)}, {vr(t + 2 * i, 2)}, {vr(s2, 2)}")
    A(f"v_add_f32 v{s1}, v{s1}, v{s1 + 1}")
    A(f"v_add_f32 v{s2}, v{s2}, v{s2 + 1}")
    for r in (2, 4, 8):
        A(f"v_add_f32_dpp v{s1}, v{s1}, v{s1} row_ror:{r} row_mask:0xf bank_mask:0xf")
        A(f"v_add_f32_dpp v{s2}, v{s2}, v{s2} row_ror:{r} row_mask:0xf bank_mask:0xf")
    A(f"""
    v_permlane32_swap_b32 v{s1}, v{s2}
    v_add_f32 v{s1}, v{s1}, v{s2}
    v_mov_b32 v{s2}, v{s1}
    v_permlane16_swap_b32 v{s1}, v{s2}
    v_add_f32 v{s1}, v{s1}, v{s2}
    v_mov_b32 v{s2}, v{s1}
    v_permlane32_swap_b32 v{s1}, v{s2}
    """)
    for i in range(8):
        A(f"v_lshlrev_b32 v{t + 2 * i}, 16, v{braw + i}")
        A(f"v_and_b32 v{t + 2 * i + 1}, 0xffff0000, v{braw + i}")
    A(f"""
    v_mul_f32 v{s1}, 0x3b000000, v{s1}
    v_mul_f32 v{s2}, 0x3b000000, v{s2}
    v_fma_f32 v{s2}, -v{s1}, v{s1}, v{s2}
    v_add_f32 v{s1}, v{s1}, v{c}
    v_max_f32 v{s2}, 0, v{s2}
    """)
    bf16r(c, s1)
    bf16r(s2, s2)
    A(f"v_add_f32 v{s2}, 0x{EPS:08x}, v{s2}")
    bf16r(s2, s2)
    A(f"v_sqrt_f32 v{s2}, v{s2}")
    A(f"v_mov_b32 v{c + 1}, v{c}")
    bf16r(s2, s2)
    A(f"v_rcp_f32 v{s2}, v{s2}")
    for i in range(8):
        A(f"v_pk_add_f32 {vr(t + 2 * i, 2)}, {vr(t + 2 * i, 2)}, {vr(c, 2)} neg_lo:[0,1] neg_hi:[0,1]")
    A(f"v_mov_b32 v{s2 + 1}, v{s2}")
    for i in range(8):
        A(f"v_cvt_pk_bf16_f32 v{out + i}, v{t + 2 * i}, v{t + 2 * i + 1}")
    for i in range(8):
        A(f"v_lshlrev_b32 v{t + 2 * i}, 16, v{out + i}")
        A(f"v_and_b32 v{t + 2 * i + 1}, 0xffff0000, v{out + i}")
    for i in range(8):
        A(f"v_pk_mul_f32 {vr(t + 2 * i, 2)}, {vr(t + 2 * i, 2)}, {vr(s2, 2)}")
    for i in range(8):
        A(f"v_cvt_pk_bf16_f32 v{out + i}, v{t + 2 * i}, v{t + 2 * i + 1}")


def tagcheck24(acc, regs, first=True):
    for base in regs:
        for i in range(4):
            if first:
                A(f"v_xor_b32 v{acc}, s{sT0 + i}, v{base + i}")
                first = False
            else:
                A(f"v_bitop3_b32 v{acc}, v{base + i}, s{sT0 + i}, v{acc} bitop3:0xbe")


def poll_tail(label, acc, low8):
    if low8:
        A(f"v_and_b32 v{acc}, 0xff, v{acc}")
    done = label + "_done"
    A(f"""
    v_cmp_ne_u32 vcc, 0, v{acc}
    s_cmp_eq_u64 vcc, 0
    s_cbranch_scc1 {done}
    s_add_u32 s{sITER}, s{sITER}, 1
    s_cmp_lt_u32 s{sITER}, {POLL_LIMIT}
    s_cbranch_scc1 {label}
    """)
    A.label(done)


def tagpack24(base, vmask):
    for i in range(4):
        A(f"v_bfi_b32 v{base + i}, v{vmask}, s{sT0 + i}, v{base + i}")


A.label(NAME + "_kernel")
A(f"""
s_cmp_ge_u32 s2, 256
s_cbranch_scc1 L_end
s_load_dwordx16 s[4:19], s[0:1], 0
s_load_dwordx4 s[20:23], s[0:1], 64
s_load_dwordx2 s[24:25], s[0:1], 80
""")
stamp(0)
A(f"""
v_lshrrev_b32 v1, 6, v0
v_and_b32 v0, 63, v0
v_readfirstlane_b32 s{sWV}, v1
s_and_b32 s{sG}, s2, 7
s_lshr_b32 s{sSLOT}, s2, 3
s_mov_b32 s{sL2E}, 0x{LOG2E:08x}
s_mov_b32 s{sITER}, 0
s_waitcnt lgkmcnt(0)
s_load_dword s{sT0}, s[24:25], 0
""")
mk_srd(SRD_WS, 24, WS_SIZE)
A(f"""
s_cmp_lt_u32 s{sSLOT}, 16
s_cbranch_scc1 L_gemv
""")

vK = 32
vVT = 64
vQ = 96
mk_srd(SRD_A, 6, 2 * 8 * 8192 * 256)
mk_srd(SRD_B, 8, 2 * 8 * 8192 * 256)
A(f"""
s_sub_u32 s64, s{sSLOT}, 16
s_lshr_b32 s65, s64, 3
s_and_b32 s66, s64, 7
s_lshl_b32 s67, s65, 3
s_add_u32 s67, s67, s{sG}
s_lshl_b32 s67, s67, 13
s_lshl_b32 s68, s66, 8
s_add_u32 s67, s67, s68
s_lshl_b32 s68, s{sWV}, 5
s_add_u32 s67, s67, s68
s_add_u32 s67, s67, 6144
s_lshl_b32 s67, s67, 8
s_add_u32 s68, s67, 4096
v_and_b32 v6, 15, v0
v_lshrrev_b32 v7, 4, v0
v_lshlrev_b32 v1, 8, v6
v_lshl_add_u32 v1, v7, 4, v1
""")
for t in range(2):
    for ks in range(4):
        A(f"buffer_load_dwordx4 {vr(vK + (t * 4 + ks) * 4, 4)}, v1, {srd(SRD_A)}, s{67 + t} offen offset:{ks * 64}")
A(f"""
v_lshrrev_b32 v2, 1, v6
v_xor_b32 v2, v2, v7
v_xor_b32 v3, 4, v2
v_and_b32 v4, 1, v6
v_lshlrev_b32 v4, 4, v4
v_lshl_add_u32 v4, v7, 8, v4
v_lshl_add_u32 v2, v2, 5, v4
v_lshl_add_u32 v3, v3, 5, v4
s_lshl_b32 s69, s{sWV}, 13
s_mov_b32 m0, s69
""")
for i in range(8):
    if i == 4:
        A(f"""
        s_add_u32 s70, s69, 4096
        s_mov_b32 m0, s70
        """)
    A(f"buffer_load_dwordx4 v{2 + (i & 1)}, {srd(SRD_B)}, s{67 + (i >> 2)} offen offset:{(i & 3) * 1024} lds")
A(f"""
v_lshrrev_b32 v4, 2, v0
v_and_b32 v5, 7, v4
v_lshlrev_b32 v4, 8, v4
v_lshl_add_u32 v4, v5, 5, v4
v_and_b32 v5, 3, v0
v_lshl_add_u32 v4, v5, 3, v4
v_add_u32 v4, s69, v4
v_lshlrev_b32 v5, 9, v5
v_lshl_add_u32 v5, v7, 5, v5
s_lshl_b32 s71, s{sG}, 1
s_add_u32 s71, s71, s65
s_lshl_b32 s72, s71, 11
s_add_u32 s72, s72, {Q_OFF}
v_mov_b32 v20, 0xff
s_waitcnt vmcnt(8) lgkmcnt(0)
s_add_u32 s{sT0}, s{sT0}, 1
s_lshr_b32 s{sT1}, s{sT0}, 8
s_lshr_b32 s{sT2}, s{sT0}, 16
s_lshr_b32 s{sT3}, s{sT0}, 24
""")
stamp(1)


def q_loads():
    for ks in range(4):
        for hf in range(2):
            A(f"buffer_load_dwordx4 {vr(vQ + ks * 8 + hf * 4, 4)}, v5, {srd(SRD_WS)}, s72 offen offset:{ks * 128 + hf * 16} sc1")


q_loads()
A("s_waitcnt vmcnt(8)")
stamp(2)
for dt in range(8):
    A(f"v_xor_b32 v{8 + dt}, {dt * 32}, v4")
for dt in range(8):
    A(f"ds_read_b64_tr_b16 {vr(vVT + dt * 4, 2)}, v{8 + dt}")
    A(f"ds_read_b64_tr_b16 {vr(vVT + dt * 4 + 2, 2)}, v{8 + dt} offset:4096")
A("s_branch L_qchk")
A.label("L_qpoll")
q_loads()
A.label("L_qchk")
A("s_waitcnt vmcnt(0)")
for i in range(16):
    if i == 0:
        A(f"v_xor_b32 v21, s{sT0}, v{vQ + 1}")
    else:
        A(f"v_bitop3_b32 v21, v{vQ + 2 * i + 1}, s{sT0}, v21 bitop3:0xbe")
poll_tail("L_qpoll", 21, False)
stamp(3)
for ks in range(4):
    b = vQ + ks * 8
    A(f"""
    v_mov_b32 v{b + 1}, v{b + 2}
    v_mov_b32 v{b + 2}, v{b + 4}
    v_mov_b32 v{b + 3}, v{b + 6}
    """)
for ks in range(4):
    for t in range(2):
        c = "0" if ks == 0 else vr(8 + 4 * t, 4)
        A(f"v_mfma_f32_16x16x32_bf16 {vr(8 + 4 * t, 4)}, {vr(vK + (t * 4 + ks) * 4, 4)}, {vr(vQ + ks * 8, 4)}, {c}")
A(f"s_mov_b32 s73, 0x{SCALE:08x}")
for i in range(4):
    A(f"v_cvt_pk_bf16_f32 v{16 + i}, v{8 + 2 * i}, v{9 + 2 * i}")
for i in range(4):
    A(f"v_lshlrev_b32 v{8 + 2 * i}, 16, v{16 + i}")
    A(f"v_and_b32 v{9 + 2 * i}, 0xffff0000, v{16 + i}")
for i in range(8):
    A(f"v_mul_f32 v{8 + i}, s73, v{8 + i}")
for i in range(4):
    A(f"v_cvt_pk_bf16_f32 v{16 + i}, v{8 + 2 * i}, v{9 + 2 * i}")
for i in range(4):
    A(f"v_lshlrev_b32 v{8 + 2 * i}, 16, v{16 + i}")
    A(f"v_and_b32 v{9 + 2 * i}, 0xffff0000, v{16 + i}")
A("""
v_max3_f32 v22, v8, v9, v10
v_max3_f32 v23, v11, v12, v13
v_max3_f32 v22, v22, v14, v15
v_max_f32 v22, v22, v23
""")
allreduce_x16(22, 23, "v_max_f32")
allreduce_x32(22, 23, "v_max_f32")
for i in range(8):
    A(f"v_sub_f32 v{8 + i}, v{8 + i}, v22")
for i in range(8):
    A(f"v_mul_f32 v{8 + i}, s{sL2E}, v{8 + i}")
for i in range(8):
    A(f"v_exp_f32 v{8 + i}, v{8 + i}")
for i in range(4):
    A(f"v_cvt_pk_bf16_f32 v{16 + i}, v{8 + 2 * i}, v{9 + 2 * i}")
A("s_waitcnt lgkmcnt(0)")
for dt in range(8):
    A(f"v_mfma_f32_16x16x32_bf16 {vr(vK + dt * 4, 4)}, {vr(vVT + dt * 4, 4)}, v[16:19], 0")
A("""
v_pk_add_f32 v[8:9], v[8:9], v[10:11]
v_pk_add_f32 v[12:13], v[12:13], v[14:15]
v_pk_add_f32 v[8:9], v[8:9], v[12:13]
v_add_f32 v23, v8, v9
""")
allreduce_x16(23, 24, "v_add_f32")
allreduce_x32(23, 24, "v_add_f32")
A(f"""
v_and_b32 v24, 3, v0
v_lshlrev_b32 v25, 9, v24
v_lshl_add_u32 v25, v7, 4, v25
v_add_u32 v25, s69, v25
v_lshlrev_b32 v24, 3, v24
v_add_u32 v24, s69, v24
""")
exec_mask(0x000f000f)
for dt in range(8):
    A(f"ds_write_b128 v25, {vr(vK + dt * 4, 4)} offset:{dt * 64}")
A("""
ds_write_b64 v24, v[22:23] offset:2048
s_mov_b64 exec, -1
s_waitcnt lgkmcnt(0)
s_barrier
""")
stamp(4)
A(f"""
s_cmp_ge_u32 s{sWV}, 2
s_cbranch_scc1 L_att_done
s_lshl_b32 s73, s{sWV}, 1
v_lshrrev_b32 v1, 5, v0
v_add_u32 v1, s73, v1
v_and_b32 v2, 31, v0
v_lshlrev_b32 v3, 9, v1
v_lshl_add_u32 v3, v2, 4, v3
v_lshlrev_b32 v4, 3, v1
""")
for i in range(8):
    A(f"ds_read_b64 {vr(64 + 2 * i, 2)}, v4 offset:{i * 8192 + 2048}")
for i in range(8):
    A(f"ds_read_b128 {vr(32 + 4 * i, 4)}, v3 offset:{i * 8192}")
A(f"""
s_lshl_b32 s73, s71, 3
s_add_u32 s73, s73, s66
s_lshl_b32 s73, s73, 11
s_add_u32 s73, s73, {P_OFF}
s_lshl_b32 s74, s71, 9
s_lshl_b32 s75, s66, 4
s_add_u32 s74, s74, s75
s_add_u32 s74, s74, {ML_OFF}
v_lshlrev_b32 v5, 7, v1
s_waitcnt lgkmcnt({0 if STAMPS else 8})
v_max3_f32 v8, v64, v66, v68
v_max3_f32 v9, v70, v72, v74
v_max3_f32 v8, v8, v76, v78
v_max_f32 v8, v8, v9
""")
for i in range(8):
    A(f"v_sub_f32 v{64 + 2 * i}, v{64 + 2 * i}, v8")
for i in range(8):
    A(f"v_mul_f32 v{64 + 2 * i}, s{sL2E}, v{64 + 2 * i}")
for i in range(8):
    A(f"v_exp_f32 v{64 + 2 * i}, v{64 + 2 * i}")
A("v_mul_f32 v9, v64, v65")
for i in range(1, 8):
    A(f"v_fmac_f32 v9, v{64 + 2 * i}, v{65 + 2 * i}")
A("s_waitcnt lgkmcnt(0)")
A("""
v_pk_mul_f32 v[12:13], v[32:33], v[64:65] op_sel_hi:[1,0]
v_pk_mul_f32 v[14:15], v[34:35], v[64:65] op_sel_hi:[1,0]
""")
for i in range(1, 8):
    A(f"v_pk_fma_f32 v[12:13], {vr(32 + 4 * i, 2)}, {vr(64 + 2 * i, 2)}, v[12:13] op_sel_hi:[1,0,1]")
    A(f"v_pk_fma_f32 v[14:15], {vr(34 + 4 * i, 2)}, {vr(64 + 2 * i, 2)}, v[14:15] op_sel_hi:[1,0,1]")
tagpack24(12, 20)
A(f"""
buffer_store_dwordx4 v[12:15], v3, {srd(SRD_WS)}, s73 offen sc1
v_mov_b32 v10, s{sT0}
v_mov_b32 v11, s{sT0}
s_mov_b32 exec_lo, 1
s_mov_b32 exec_hi, 1
buffer_store_dwordx4 v[8:11], v5, {srd(SRD_WS)}, s74 offen sc1
s_mov_b64 exec, -1
""")
A.label("L_att_done")
stamp(5)
stamp_flush(6)
A("s_endpgm")

A.label("L_gemv")
vWQ, vWO, vW1, vW2 = 64, 80, 96, 104
vXN = 44
vC = 52
vXR = 40
vMSK = 41
mk_srd(SRD_X, 4, 2048)
mk_srd(SRD_A, 10, 512 * 4096 * 2)
mk_srd(SRD_B, 12, 4096 * 512 * 2)
mk_srd(SRD_W1, 16, 512 * 1792 * 2)
mk_srd(SRD_W2, 18, 1792 * 512 * 2)
mk_srd(SRD_OUT, 20, 2048)
A(f"""
v_and_b32 v112, 1, v0
v_lshrrev_b32 v113, 4, v0
v_lshrrev_b32 v114, 1, v0
v_lshlrev_b32 v1, 10, v112
v_lshl_add_u32 v2, v114, 5, v1
s_lshl_b32 s64, s{sWV}, 7
v_lshl_add_u32 v3, v113, 4, v1
v_add_u32 v3, s64, v3
""")
A(f"""
buffer_load_dwordx4 v[8:11], v2, {srd(SRD_X)}, 0 offen
buffer_load_dwordx4 v[12:15], v2, {srd(SRD_X)}, 0 offen offset:16
buffer_load_dword v42, v1, {srd(SRD_X)}, 0 offen
buffer_load_dwordx4 v[32:35], v3, {srd(SRD_X)}, 0 offen
buffer_load_dwordx4 v[36:39], v3, {srd(SRD_X)}, 0 offen offset:64
""")
A(f"""
v_lshrrev_b32 v115, 5, v0
v_and_b32 v116, 15, v0
v_and_b32 v117, 1, v113
v_lshlrev_b32 v4, 10, v115
v_lshl_add_u32 v4, v116, 3, v4
v_lshl_add_u32 v4, v117, 2, v4
v_add_u32 v4, s64, v4
buffer_load_dword v{vXR}, v4, {srd(SRD_X)}, 0 offen
""")
A(f"""
v_lshrrev_b32 v5, 2, v0
v_and_b32 v6, 3, v0
v_lshlrev_b32 v7, 1, v115
v_xor_b32 v6, v6, v7
v_lshlrev_b32 v6, 4, v6
v_lshl_add_u32 v118, v5, 13, v6
v_lshl_add_u32 v119, v5, 10, v6
s_lshl_b32 s65, s{sWV}, 19
s_lshl_b32 s66, s{sG}, 10
s_add_u32 s65, s65, s66
s_lshl_b32 s66, s{sSLOT}, 6
s_add_u32 s65, s65, s66
s_lshl_b32 s67, s{sWV}, 12
s_add_u32 s67, s67, {L_STG}
""")
for i in range(4):
    A(f"""
    s_add_u32 s68, s67, {i * 1024}
    s_mov_b32 m0, s68
    s_add_u32 s69, s65, {i * 16 * 8192}
    buffer_load_dwordx4 v118, {srd(SRD_A)}, s69 offen lds
    """)
A(f"""
v_lshrrev_b32 v5, 2, v0
v_and_b32 v5, 3, v5
v_lshl_add_u32 v5, v113, 3, v5
v_lshlrev_b32 v120, 6, v5
v_lshl_add_u32 v120, v117, 5, v120
v_and_b32 v6, 3, v0
v_lshl_add_u32 v120, v6, 3, v120
v_add_u32 v120, s67, v120
v_xor_b32 v121, 32, v120
v_mov_b32 v{vMSK}, 0xff
s_waitcnt vmcnt(4)
""")
stamp(1)
layernorm(8, 42, 32, vXN, 16 if False else 80)
A(f"""
s_waitcnt vmcnt(0) lgkmcnt(0)
s_add_u32 s{sT0}, s{sT0}, 1
s_lshr_b32 s{sT1}, s{sT0}, 8
s_lshr_b32 s{sT2}, s{sT0}, 16
s_lshr_b32 s{sT3}, s{sT0}, 24
""")
stamp(2)


def tr_64(dst, extra):
    for ks in range(2):
        for nt in range(2):
            for hf in range(2):
                A(f"ds_read_b64_tr_b16 {vr(dst + (ks * 2 + nt) * 4 + hf * 2, 2)}, v{120 + nt} offset:{extra + ks * 2048 + hf * 256}")


tr_64(vWQ, 0)
A(f"""
s_lshl_b32 s70, s{sWV}, 8
v_lshlrev_b32 v122, 7, v112
v_lshl_add_u32 v122, v113, 4, v122
v_add_u32 v122, s70, v122
s_waitcnt lgkmcnt(0)
""")


def gemv32(w, bop):
    for ks in range(2):
        for nt in range(2):
            c = "0" if ks == 0 else vr(vC + 4 * nt, 4)
            A(f"v_mfma_f32_16x16x32_bf16 {vr(vC + 4 * nt, 4)}, {vr(w + (ks * 2 + nt) * 4, 4)}, {vr(bop + 4 * ks, 4)}, {c}")


gemv32(vWQ, vXN)
A(f"""
s_lshl_b32 s65, s{sG}, 19
s_lshl_b32 s66, s{sWV}, 16
s_add_u32 s65, s65, s66
s_lshl_b32 s66, s{sSLOT}, 6
s_add_u32 s65, s65, s66
""")
for i in range(4):
    A(f"""
    s_add_u32 s68, s67, {32768 + i * 1024}
    s_mov_b32 m0, s68
    s_add_u32 s69, s65, {i * 16 * 1024}
    buffer_load_dwordx4 v119, {srd(SRD_B)}, s69 offen lds
    """)
exec_mask(0x00030003)
A(f"""
ds_write_b128 v122, {vr(vC, 4)} offset:{L_RED}
ds_write_b128 v122, {vr(vC + 4, 4)} offset:{L_RED + 64}
s_mov_b64 exec, -1
s_waitcnt lgkmcnt(0)
s_barrier
""")


def red_sum(lbase):
    for i in range(8):
        A(f"ds_read_b128 {vr(8 + 4 * i, 4)}, v123 offset:{lbase + i * 256}")
    A("s_waitcnt lgkmcnt(0)")
    for st in (16, 8, 4):
        for j in range(0, st, 2):
            A(f"v_pk_add_f32 {vr(8 + j, 2)}, {vr(8 + j, 2)}, {vr(8 + j + st, 2)}")


A(f"""
v_and_b32 v5, 7, v114
v_lshlrev_b32 v123, 7, v112
v_lshl_add_u32 v123, v5, 4, v123
s_cmp_lg_u32 s{sWV}, 0
s_cbranch_scc1 L_q_pub_done
""")
red_sum(L_RED)
A(f"""
s_lshl_b32 s70, s{sG}, 12
s_lshl_b32 s71, s{sSLOT}, 7
s_add_u32 s70, s70, s71
s_add_u32 s70, s70, {Q_OFF}
v_lshlrev_b32 v6, 11, v112
v_lshl_add_u32 v6, v5, 4, v6
v_cvt_pk_bf16_f32 v12, v8, v9
v_cvt_pk_bf16_f32 v14, v10, v11
v_mov_b32 v13, s{sT0}
v_mov_b32 v15, s{sT0}
s_mov_b64 exec, 0xffff
buffer_store_dwordx4 v[12:15], v6, {srd(SRD_WS)}, s70 offen sc1
s_mov_b64 exec, -1
""")
A.label("L_q_pub_done")
stamp(3)
A(f"""
s_cmp_ge_u32 s2, 112
s_cbranch_scc1 L_no_ffn_load
v_lshrrev_b32 v5, 3, v114
v_and_b32 v5, 1, v5
v_lshlrev_b32 v5, 2, v5
v_xor_b32 v5, v5, v114
s_movk_i32 s70, 3584
v_mul_lo_u32 v5, v5, s70
v_lshl_add_u32 v5, v112, 4, v5
s_mul_i32 s71, s{sWV}, {64 * 3584}
s_lshl_b32 s72, s2, 5
s_add_u32 s71, s71, s72
s_mov_b32 m0, s67
s_add_u32 s72, s71, {32 * 3584}
buffer_load_dwordx4 v5, {srd(SRD_W1)}, s71 offen lds
s_add_u32 s68, s67, 1024
s_mov_b32 m0, s68
v_lshrrev_b32 v6, 3, v0
buffer_load_dwordx4 v5, {srd(SRD_W1)}, s72 offen lds
v_lshrrev_b32 v7, 1, v6
v_and_b32 v8, 7, v0
v_lshrrev_b32 v9, 1, v8
v_xor_b32 v9, v9, v7
v_lshlrev_b32 v9, 5, v9
v_lshl_add_u32 v9, v112, 4, v9
v_lshl_add_u32 v9, v6, 10, v9
s_lshl_b32 s71, s2, 14
s_add_u32 s71, s71, s64
s_add_u32 s72, s71, 8192
s_add_u32 s68, s67, 2048
s_mov_b32 m0, s68
s_nop 0
buffer_load_dwordx4 v9, {srd(SRD_W2)}, s71 offen lds
s_add_u32 s68, s67, 3072
s_mov_b32 m0, s68
s_nop 0
buffer_load_dwordx4 v9, {srd(SRD_W2)}, s72 offen lds
""")
A.label("L_no_ffn_load")
A("s_waitcnt vmcnt(0)")
tr_64(vWO, 32768)
A(f"""
v_lshrrev_b32 v5, 2, v0
v_and_b32 v6, 3, v5
v_lshl_add_u32 v6, v113, 3, v6
v_lshlrev_b32 v6, 5, v6
v_lshl_add_u32 v6, v117, 7, v6
v_and_b32 v7, 3, v0
v_lshl_add_u32 v6, v7, 3, v6
v_add_u32 v6, s67, v6
v_xor_b32 v8, 0x80, v6
v_lshrrev_b32 v9, 1, v5
v_and_b32 v9, 3, v9
v_lshlrev_b32 v9, 5, v9
v_lshl_add_u32 v9, v5, 7, v9
v_lshl_add_u32 v9, v7, 3, v9
v_add_u32 v9, s67, v9
v_xor_b32 v10, 32, v9
v_xor_b32 v11, 64, v9
v_xor_b32 v12, 0x60, v9
""")
for ks in range(2):
    A(f"ds_read_b64_tr_b16 {vr(vW1 + ks * 4, 2)}, v6 offset:{ks * 1024}")
    A(f"ds_read_b64_tr_b16 {vr(vW1 + ks * 4 + 2, 2)}, v8 offset:{ks * 1024}")
for nt in range(4):
    A(f"ds_read_b64_tr_b16 {vr(vW2 + nt * 2, 2)}, v{9 + nt} offset:2048")
A(f"""
v_lshlrev_b32 v124, 13, v113
v_lshl_add_u32 v124, v116, 4, v124
s_lshl_b32 s70, s{sG}, 15
s_lshl_b32 s71, s{sWV}, 8
s_add_u32 s70, s70, s71
s_add_u32 s70, s70, {P_OFF}
s_add_u32 s71, s70, 4096
v_lshlrev_b32 v125, 9, v115
v_lshl_add_u32 v125, v117, 6, v125
s_lshl_b32 s72, s{sG}, 10
s_lshr_b32 s73, s{sWV}, 1
s_lshl_b32 s73, s73, 7
s_add_u32 s72, s72, s73
s_add_u32 s72, s72, {ML_OFF}
s_mov_b32 s{sITER}, 0
s_waitcnt lgkmcnt(0)
""")
stamp(4)
A.label("L_p_poll")
for i in range(4):
    A(f"buffer_load_dwordx4 {vr(24 + 4 * i, 4)}, v125, {srd(SRD_WS)}, s72 offen offset:{16 * i} sc1")
for i in range(4):
    A(f"buffer_load_dwordx4 {vr(8 + 4 * i, 4)}, v124, {srd(SRD_WS)}, s{70 + (i >> 1)} offen offset:{2048 * (i & 1)} sc1")
A("s_waitcnt vmcnt(0)")
tagcheck24(5, [8, 12, 16, 20])
A("v_and_b32 v5, 0xff, v5")
for i in range(4):
    A(f"v_bitop3_b32 v5, v{26 + 4 * i}, s{sT0}, v5 bitop3:0xbe")
poll_tail("L_p_poll", 5, False)
stamp(5)
A("""
v_max3_f32 v5, v24, v28, v32
v_max_f32 v5, v5, v36
""")
allreduce_x16(5, 6, "v_max_f32")
for i in range(4):
    A(f"v_sub_f32 v{24 + 4 * i}, v{24 + 4 * i}, v5")
for i in range(4):
    A(f"v_mul_f32 v{24 + 4 * i}, s{sL2E}, v{24 + 4 * i}")
for i in range(4):
    A(f"v_exp_f32 v{24 + 4 * i}, v{24 + 4 * i}")
A("""
v_mul_f32 v6, v24, v25
v_pk_mul_f32 v[56:57], v[8:9], v[24:25] op_sel_hi:[1,0]
v_pk_mul_f32 v[58:59], v[10:11], v[24:25] op_sel_hi:[1,0]
""")
for i in range(1, 4):
    A(f"v_fmac_f32 v6, v{24 + 4 * i}, v{25 + 4 * i}")
    A(f"v_pk_fma_f32 v[56:57], {vr(8 + 4 * i, 2)}, {vr(24 + 4 * i, 2)}, v[56:57] op_sel_hi:[1,0,1]")
    A(f"v_pk_fma_f32 v[58:59], {vr(10 + 4 * i, 2)}, {vr(24 + 4 * i, 2)}, v[58:59] op_sel_hi:[1,0,1]")
allreduce_x16(6, 7, "v_add_f32")
A(f"""
v_permlane16_swap_b32 v56, v58
v_permlane16_swap_b32 v57, v59
v_rcp_f32 v6, v6
v_add_f32 v56, v56, v58
v_add_f32 v57, v57, v59
s_lshl_b32 s73, s{sWV}, 8
v_lshlrev_b32 v7, 7, v115
v_lshl_add_u32 v7, v116, 3, v7
v_lshl_add_u32 v7, v117, 2, v7
v_add_u32 v7, s73, v7
v_mul_f32 v56, v56, v6
v_mul_f32 v57, v57, v6
v_cvt_pk_bf16_f32 v56, v56, v57
ds_write_b32 v7, v56 offset:{L_OB}
s_waitcnt lgkmcnt(0)
ds_read_b128 {vr(vXN, 4)}, v122 offset:{L_OB}
ds_read_b128 {vr(vXN + 4, 4)}, v122 offset:{L_OB + 64}
s_waitcnt lgkmcnt(0)
""")
gemv32(vWO, vXN)
exec_mask(0x00030003)
A(f"""
ds_write_b128 v122, {vr(vC, 4)} offset:{L_RED2}
ds_write_b128 v122, {vr(vC + 4, 4)} offset:{L_RED2 + 64}
s_mov_b64 exec, -1
s_waitcnt lgkmcnt(0)
s_barrier
s_cmp_lg_u32 s{sWV}, 0
s_cbranch_scc1 L_a_pub_done
""")
red_sum(L_RED2)
A(f"""
s_lshl_b32 s70, s{sG}, 12
s_lshl_b32 s71, s{sSLOT}, 7
s_add_u32 s70, s70, s71
s_add_u32 s70, s70, {A_OFF}
v_and_b32 v5, 7, v114
v_lshlrev_b32 v6, 11, v112
v_lshl_add_u32 v6, v5, 4, v6
""")
tagpack24(8, vMSK)
A(f"""
s_mov_b64 exec, 0xffff
buffer_store_dwordx4 v[8:11], v6, {srd(SRD_WS)}, s70 offen sc1
s_mov_b64 exec, -1
""")
A.label("L_a_pub_done")
stamp(6)
A(f"""
v_lshlrev_b32 v124, 14, v117
v_lshl_add_u32 v124, v115, 11, v124
v_lshl_add_u32 v124, v116, 4, v124
s_lshl_b32 s70, s{sWV}, 8
s_add_u32 s70, s70, {A_OFF}
s_add_u32 s71, s70, 4096
s_add_u32 s72, s70, 8192
s_add_u32 s73, s70, 12288
s_mov_b32 s{sITER}, 0
""")
A.label("L_a_poll")
for i in range(4):
    A(f"buffer_load_dwordx4 {vr(8 + 4 * i, 4)}, v124, {srd(SRD_WS)}, s{70 + i} offen sc1")
A("s_waitcnt vmcnt(0)")
tagcheck24(5, [8, 12, 16, 20])
poll_tail("L_a_poll", 5, True)
stamp(7)
A(f"""
v_pk_add_f32 v[8:9], v[8:9], v[12:13]
v_pk_add_f32 v[10:11], v[10:11], v[14:15]
v_pk_add_f32 v[16:17], v[16:17], v[20:21]
v_pk_add_f32 v[18:19], v[18:19], v[22:23]
v_pk_add_f32 v[8:9], v[8:9], v[16:17]
v_pk_add_f32 v[10:11], v[10:11], v[18:19]
v_lshlrev_b32 v12, 16, v{vXR}
v_and_b32 v13, 0xffff0000, v{vXR}
v_permlane16_swap_b32 v8, v10
v_permlane16_swap_b32 v9, v11
v_add_f32 v8, v8, v10
v_add_f32 v9, v9, v11
v_cvt_pk_bf16_f32 v8, v8, v9
v_lshlrev_b32 v10, 16, v8
v_and_b32 v11, 0xffff0000, v8
v_pk_add_f32 v[10:11], v[10:11], v[12:13]
v_cvt_pk_bf16_f32 v8, v10, v11
ds_write_b32 v4, v8 offset:{L_H}
s_waitcnt lgkmcnt(0)
s_barrier
s_cmp_ge_u32 s2, 112
s_cbranch_scc1 L_final
ds_read_b128 v[8:11], v2 offset:{L_H}
ds_read_b128 v[12:15], v2 offset:{L_H + 16}
ds_read_b32 v42, v1 offset:{L_H}
ds_read_b128 v[32:35], v3 offset:{L_H}
ds_read_b128 v[36:39], v3 offset:{L_H + 64}
s_waitcnt lgkmcnt(0)
""")
layernorm(8, 42, 32, vXN, 64)
A(f"""
v_mfma_f32_16x16x32_bf16 {vr(vC, 4)}, {vr(vW1, 4)}, {vr(vXN, 4)}, 0
v_mfma_f32_16x16x32_bf16 {vr(vC, 4)}, {vr(vW1 + 4, 4)}, {vr(vXN + 4, 4)}, {vr(vC, 4)}
v_lshlrev_b32 v5, 6, v112
v_lshl_add_u32 v5, v113, 4, v5
s_lshl_b32 s70, s{sWV}, 7
v_add_u32 v6, s70, v5
""")
exec_mask(0x00030003)
A(f"""
ds_write_b128 v6, {vr(vC, 4)} offset:{L_RED1}
s_mov_b64 exec, -1
s_waitcnt lgkmcnt(0)
s_barrier
""")
for i in range(8):
    A(f"ds_read_b128 {vr(8 + 4 * i, 4)}, v5 offset:{L_RED1 + i * 128}")
A("s_waitcnt lgkmcnt(0)")
for st in (16, 8, 4):
    for j in range(0, st, 2):
        A(f"v_pk_add_f32 {vr(8 + j, 2)}, {vr(8 + j, 2)}, {vr(8 + j + st, 2)}")
A(f"""
v_cvt_pk_bf16_f32 v12, v8, v9
v_cvt_pk_bf16_f32 v13, v10, v11
v_lshlrev_b32 v8, 16, v12
v_and_b32 v9, 0xffff0000, v12
v_lshlrev_b32 v10, 16, v13
v_and_b32 v11, 0xffff0000, v13
""")
for i in range(4):
    A(f"v_mul_f32 v{12 + i}, -s{sL2E}, v{8 + i}" if False else f"v_mul_f32 v{12 + i}, s{sL2E}, v{8 + i}")
for i in range(4):
    A(f"v_exp_f32 v{12 + i}, -v{12 + i}")
for i in range(4):
    A(f"v_add_f32 v{12 + i}, 1.0, v{12 + i}")
for i in range(4):
    A(f"v_rcp_f32 v{12 + i}, v{12 + i}")
for i in range(4):
    A(f"v_mul_f32 v{8 + i}, v{8 + i}, v{12 + i}")
A(f"""
v_cvt_pk_bf16_f32 v12, v8, v9
v_cvt_pk_bf16_f32 v13, v10, v11
""")
for nt in range(4):
    A(f"v_mfma_f32_16x16x16_bf16 {vr(16 + 4 * nt, 4)}, {vr(vW2 + 2 * nt, 2)}, v[12:13], 0")
A(f"""
v_lshlrev_b32 v5, 11, v112
v_lshl_add_u32 v5, v113, 4, v5
s_lshl_b32 s70, s2, 12
s_lshl_b32 s71, s{sWV}, 8
s_add_u32 s70, s70, s71
s_add_u32 s70, s70, {F_OFF}
""")
exec_mask(0x00030003)
for nt in range(4):
    tagpack24(16 + 4 * nt, vMSK)
    A(f"buffer_store_dwordx4 {vr(16 + 4 * nt, 4)}, v5, {srd(SRD_WS)}, s70 offen offset:{nt * 64} sc1")
A("s_mov_b64 exec, -1")
A.label("L_final")
stamp(8)
A(f"""
s_cmp_lg_u32 s{sWV}, 0
s_cbranch_scc1 L_g_done
v_lshlrev_b32 v5, 12, v114
v_lshl_add_u32 v5, v112, 4, v5
v_and_b32 v6, 15, v114
v_lshlrev_b32 v6, 12, v6
v_lshl_add_u32 v6, v112, 4, v6
s_lshl_b32 s70, s2, 5
s_add_u32 s70, s70, {F_OFF}
s_add_u32 s71, s70, {32 * 4096}
s_add_u32 s72, s70, {64 * 4096}
s_add_u32 s73, s70, {96 * 4096}
s_lshl_b32 s74, s2, 4
v_lshlrev_b32 v7, 3, v112
v_add_u32 v7, s74, v7
s_mov_b32 s{sITER}, 0
ds_read_b64 v[24:25], v7 offset:{L_H}
""")
A.label("L_f_poll")
for i in range(4):
    A(f"buffer_load_dwordx4 {vr(8 + 4 * i, 4)}, v{6 if i == 3 else 5}, {srd(SRD_WS)}, s{70 + i} offen sc1")
A("s_waitcnt vmcnt(0)")
tagcheck24(26, [8, 12, 16, 20])
poll_tail("L_f_poll", 26, True)
stamp(9)
A(f"""
v_pk_add_f32 v[8:9], v[8:9], v[12:13]
v_pk_add_f32 v[10:11], v[10:11], v[14:15]
v_pk_add_f32 v[8:9], v[8:9], v[16:17]
v_pk_add_f32 v[10:11], v[10:11], v[18:19]
s_mov_b32 exec_hi, 0
v_pk_add_f32 v[8:9], v[8:9], v[20:21]
v_pk_add_f32 v[10:11], v[10:11], v[22:23]
s_mov_b64 exec, -1
""")
for r in (2, 4, 8):
    for j in range(4):
        A(f"v_add_f32_dpp v{8 + j}, v{8 + j}, v{8 + j} row_ror:{r} row_mask:0xf bank_mask:0xf")
for j in range(4):
    A(f"v_mov_b32 v{12 + j}, v{8 + j}")
for j in range(4):
    A(f"v_permlane16_swap_b32 v{8 + j}, v{12 + j}")
for j in range(4):
    A(f"v_add_f32 v{8 + j}, v{8 + j}, v{12 + j}")
for j in range(4):
    A(f"v_mov_b32 v{12 + j}, v{8 + j}")
for j in range(4):
    A(f"v_permlane32_swap_b32 v{8 + j}, v{12 + j}")
for j in range(4):
    A(f"v_add_f32 v{8 + j}, v{8 + j}, v{12 + j}")
A(f"""
v_cvt_pk_bf16_f32 v12, v8, v9
v_cvt_pk_bf16_f32 v13, v10, v11
v_lshlrev_b32 v8, 16, v12
v_and_b32 v9, 0xffff0000, v12
v_lshlrev_b32 v10, 16, v13
v_and_b32 v11, 0xffff0000, v13
s_waitcnt lgkmcnt(0)
v_lshlrev_b32 v12, 16, v24
v_and_b32 v13, 0xffff0000, v24
v_lshlrev_b32 v14, 16, v25
v_and_b32 v15, 0xffff0000, v25
v_pk_add_f32 v[8:9], v[8:9], v[12:13]
v_pk_add_f32 v[10:11], v[10:11], v[14:15]
v_cvt_pk_bf16_f32 v12, v8, v9
v_cvt_pk_bf16_f32 v13, v10, v11
s_mov_b64 exec, 3
buffer_store_dwordx2 v[12:13], v7, {srd(SRD_OUT)}, 0 offen
s_cmp_lg_u32 s2, 0
s_cbranch_scc1 L_no_epoch
s_mov_b64 exec, 1
v_mov_b32 v5, 0
v_mov_b32 v6, s{sT0}
buffer_store_dword v6, v5, {srd(SRD_WS)}, 0 offen
""")
A.label("L_no_epoch")
A("s_mov_b64 exec, -1")
A.label("L_g_done")
stamp(10)
stamp_flush(11)
A.label("L_end")
A("s_endpgm")

hdr = open("cdna_kernels/%s.s.ref" % NAME).read().split("; Override")[0]
src = hdr + f"""; @launch grid=(256,1,1) block=(512,1,1) lds={LDS_SIZE}
.amdgcn_target "amdgcn-amd-amdhsa--gfx950"
.text
.globl {NAME}_kernel
.p2align 8
.type {NAME}_kernel,@function
""" + A.text() + f""".section .rodata,"a"
.p2align 6
.amdhsa_kernel {NAME}_kernel
  .amdhsa_next_free_vgpr 128
  .amdhsa_next_free_sgpr 102
  .amdhsa_accum_offset 128
  .amdhsa_group_segment_fixed_size 0
  .amdhsa_kernarg_size 88
  .amdhsa_user_sgpr_count 2
  .amdhsa_user_sgpr_kernarg_segment_ptr 1
  .amdhsa_system_sgpr_workgroup_id_x 1
.end_amdhsa_kernel
"""
open(OUT, "w").write(src)
print("wrote", OUT, len(src), "bytes")
```

```python
import re

TRANS = ("v_exp_f32", "v_log_f32", "v_rcp_f32", "v_rsq_f32", "v_sqrt_f32", "v_sin_f32", "v_cos_f32")


def regs_of(tok):
    tok = tok.strip()
    tok = tok.lstrip("-")
    m = re.fullmatch(r"abs\((.*)\)", tok)
    if m:
        tok = m.group(1)
    m = re.fullmatch(r"\|(.*)\|", tok)
    if m:
        tok = m.group(1)
    m = re.fullmatch(r"([vsa])(\d+)", tok)
    if m:
        return {(m.group(1), int(m.group(2)))}
    m = re.fullmatch(r"([vsa])\[(\d+):(\d+)\]", tok)
    if m:
        return {(m.group(1), i) for i in range(int(m.group(2)), int(m.group(3)) + 1)}
    if tok in ("vcc", "vcc_lo", "vcc_hi"):
        return {("vcc", 0)}
    if tok in ("exec", "exec_lo", "exec_hi"):
        return {("exec", 0)}
    if tok == "m0":
        return {("m0", 0)}
    return set()


def split_ops(s):
    out, depth, cur = [], 0, ""
    for ch in s:
        if ch in "[(":
            depth += 1
        if ch in "])":
            depth -= 1
        if ch == "," and depth == 0:
            out.append(cur)
            cur = ""
        else:
            cur += ch
    if cur.strip():
        out.append(cur)
    return [o.strip() for o in out]


class Ins:
    def __init__(self, text):
        self.text = text
        t = text.split(";")[0].strip()
        self.label = t.endswith(":")
        self.directive = t.startswith(".")
        self.op = ""
        self.w = set()
        self.r = set()
        self.kind = "other"
        self.srcC = set()
        self.srcAB = set()
        if not t or self.label or self.directive:
            self.kind = "none"
            return
        parts = t.split(None, 1)
        self.op = parts[0]
        rest = parts[1] if len(parts) > 1 else ""
        ops = split_ops(rest)
        clean = []
        mods = ""
        for o in ops:
            sp = o.split()
            clean.append(sp[0] if sp else "")
            mods += " " + " ".join(sp[1:])
        self.mods = mods
        ops = clean
        op = self.op
        R = [regs_of(o) for o in ops]
        allr = set().union(*R) if R else set()
        if op.startswith("v_mfma"):
            self.kind = "mfma"
            self.w = R[0]
            self.srcAB = R[1] | R[2]
            self.srcC = R[3] if len(R) > 3 else set()
            self.r = self.srcAB | self.srcC
        elif op.startswith("v_permlane") and "swap" in op:
            self.kind = "valu"
            self.w = R[0] | R[1]
            self.r = R[0] | R[1]
            self.perm = True
        elif op.startswith("v_"):
            self.kind = "valu"
            self.w = R[0]
            self.r = set().union(*R[1:]) if len(R) > 1 else set()
            if op.startswith(("v_fmac", "v_pk_fmac", "v_dot2c")):
                self.r |= R[0]
            if op.startswith(("v_add_co", "v_sub_co", "v_addc_co", "v_subb_co")):
                self.w |= R[1]
            if op.startswith("v_cndmask") and len(ops) == 3:
                self.r |= {("vcc", 0)}
            if op.startswith("v_cmpx"):
                self.w |= {("exec", 0)}
        elif op.startswith(("buffer_load", "global_load")):
            self.kind = "vmem"
            if " lds" in (" " + mods + " ") or "_lds_" in op:
                self.r = allr | {("m0", 0)}
                self.ldsdma = True
            else:
                self.w = R[0]
                self.r = set().union(*R[1:])
        elif op.startswith(("buffer_store", "global_store", "buffer_atomic", "global_atomic")):
            self.kind = "vmem"
            self.r = allr
            if op.startswith("buffer_"):
                self.sdata = R[0]
            else:
                self.sdata = R[1]
            self.wide = op.endswith(("x3", "x4"))
        elif op.startswith("ds_read") or op.startswith(("ds_bpermute", "ds_permute", "ds_swizzle")):
            self.kind = "ds"
            self.w = R[0]
            self.r = set().union(*R[1:])
        elif op.startswith("ds_"):
            self.kind = "ds"
            self.r = allr
        elif op.startswith("s_"):
            self.kind = "salu"
            if op.startswith(("s_cmp", "s_cbranch", "s_branch", "s_waitcnt", "s_nop", "s_barrier", "s_endpgm",
                              "s_sleep", "s_setprio")):
                self.r = allr
            else:
                self.w = R[0] if R else set()
                self.r = set().union(*R[1:]) if len(R) > 1 else set()
                if "saveexec" in op:
                    self.w |= {("exec", 0)}
        self.is_dpp = "_dpp" in op or "row_" in getattr(self, "mods", "") or "quad_perm" in getattr(self, "mods", "")
        self.is_trans = op.replace("_e32", "").replace("_e64", "") in TRANS

    def states(self):
        if self.kind == "none":
            return 0
        if self.op == "s_nop":
            return int(self.text.split(";")[0].split()[1], 0) + 1
        return 1


def isv(s):
    return {x for x in s if x[0] in ("v", "a")}


def iss(s):
    return {x for x in s if x[0] in ("s", "vcc")}


def need(prod, cons):
    n = 0
    pv = isv(prod.w)
    ps = iss(prod.w)
    if prod.kind == "valu":
        if cons.kind == "mfma" and pv & cons.r:
            n = max(n, 2)
        if cons.kind == "valu" and (getattr(cons, "perm", False) or cons.is_dpp) and pv & cons.r:
            n = max(n, 2)
        if prod.is_trans and cons.kind in ("valu", "mfma") and not cons.is_trans and pv & cons.r:
            n = max(n, 1)
        if prod.is_trans and cons.kind in ("vmem", "ds") and pv & cons.r:
            n = max(n, 1)
        if cons.op.startswith(("v_readlane", "v_readfirstlane")) and pv & cons.r:
            n = max(n, 1)
        if ps:
            if cons.kind == "valu" and ps & cons.r:
                n = max(n, 4 if cons.op.startswith(("v_readlane", "v_writelane")) else 2)
            if cons.kind == "vmem" and ps & cons.r:
                n = max(n, 5)
            if cons.kind == "salu" and ps & cons.r:
                n = max(n, 1)
        if ("exec", 0) in prod.w:
            n = max(n, 5)
    if prod.kind == "mfma":
        d = prod.w
        passes = 4
        if "32x32x16" in prod.op or "32x32x8" in prod.op:
            passes = 8
        if "4x4x4" in prod.op:
            passes = 2
        t_c = {2: 4, 4: 6, 8: 10}[passes]
        t_ab = {2: 5, 4: 8, 8: 12}[passes]
        t_war = {2: 1, 4: 3, 8: 7}[passes]
        if cons.kind == "mfma":
            if passes == 2 and d == cons.srcC:
                n = max(n, 2)
            if d & cons.srcAB:
                n = max(n, t_ab)
            if d & cons.srcC and d != cons.srcC:
                n = max(n, t_c)
            if d & cons.w and d != cons.srcC:
                n = max(n, t_ab)
        elif cons.kind in ("valu", "vmem", "ds"):
            if d & (cons.r | cons.w):
                n = max(n, t_ab)
        if cons.kind in ("valu",) and prod.srcC & cons.w:
            n = max(n, t_war)
    if prod.kind == "salu" and ("m0", 0) in prod.w and getattr(cons, "ldsdma", False):
        n = max(n, 1)
    if prod.kind == "vmem" and getattr(prod, "wide", False):
        if prod.sdata & cons.w:
            n = max(n, 2)
    return n


def pad(lines):
    out = []
    hist = []
    pos = 0
    for text in lines:
        ins = Ins(text)
        if ins.kind == "none":
            out.append(text)
            continue
        req = 0
        for p, ppos in hist[-24:]:
            n = need(p, ins)
            if n:
                dist = pos - ppos
                req = max(req, n - dist)
        while req > 0:
            k = min(req, 16)
            out.append(f"    s_nop {k - 1}")
            pos += k
            req -= k
        out.append(text)
        st = ins.states()
        pos += st
        hist.append((ins, pos))
    return out


class Asm:
    def __init__(self):
        self.lines = []

    def __call__(self, s):
        for l in s.strip("\n").split("\n"):
            l = l.strip()
            if not l:
                continue
            if l.endswith(":") or l.startswith("."):
                self.lines.append(l)
            else:
                self.lines.append("    " + l)

    def label(self, name):
        self.lines.append(name + ":")

    def text(self):
        return "\n".join(pad(self.lines)) + "\n"
```

```python
import sys
import struct
from asmlib import Asm

NAME = "sequential_preLN__sliding_block_cached__dense_activation_silu__decode"
STAMPS = "--stamps" in sys.argv
WARM = "--warm" in sys.argv
OUT = "cdna_kernels/%s.s" % NAME
for a in sys.argv[1:]:
    if a.startswith("--out="):
        OUT = a[6:]

Q_OFF = 4096
P_OFF = Q_OFF + 65536
ML_OFF = P_OFF + 262144
A_OFF = ML_OFF + 16384
F_OFF = A_OFF + 32768
WS_END = F_OFF + 28 * 4096
ST_OFF = 1 << 20
WS_SIZE = ST_OFF + 2048 * 128 if STAMPS else WS_END
POLL_LIMIT = 1 << 17

L_RED = 0
L_RED2 = 4096
L_H = 8192
L_STG = 10240
LDS_SIZE = L_STG + 65536
L_Q = 65536


def f32bits(x):
    return struct.unpack("<I", struct.pack("<f", x))[0]


LOG2E = f32bits(1.4426950408889634)
SCALE = f32bits(128 ** -0.5)
EPS = f32bits(1e-5)

sWV, sG, sSLOT, sT0 = 26, 27, 28, 29
sB0 = 30
sITER = 34
sL2E = 35
sTMP = 3
SRD_WS, SRD_A, SRD_B, SRD_X, SRD_W1, SRD_W2, SRD_OUT = 36, 40, 44, 48, 52, 56, 60
sST = 76

A = Asm()
nstamp = [0]


def srd(n):
    return f"s[{n}:{n + 3}]"


def vr(a, n):
    return f"v[{a}:{a + n - 1}]"


def stamp(idx):
    if STAMPS:
        A(f"s_memrealtime s[{sST + 2 * idx}:{sST + 2 * idx + 1}]")


def stamp_flush(nst):
    if not STAMPS:
        return
    A(f"""
    s_waitcnt lgkmcnt(0)
    s_mov_b64 exec, 1
    s_lshl_b32 s{sTMP}, s2, 3
    s_add_u32 s{sTMP}, s{sTMP}, s{sWV}
    s_lshl_b32 s{sTMP}, s{sTMP}, 7
    s_add_u32 s{sTMP}, s{sTMP}, {ST_OFF}
    v_mov_b32 v1, 0
    """)
    for i in range(nst):
        A(f"""
        v_mov_b32 v2, s{sST + 2 * i}
        v_mov_b32 v3, s{sST + 2 * i + 1}
        buffer_store_dwordx2 v[2:3], v1, {srd(SRD_WS)}, s{sTMP} offen offset:{8 * i}
        s_nop 1
        """)
    A("s_mov_b64 exec, -1")


def mk_srd(n, ptr, size):
    A(f"""
    s_mov_b32 s{n}, s{ptr}
    s_mov_b32 s{n + 1}, s{ptr + 1}
    s_mov_b32 s{n + 2}, {size}
    s_mov_b32 s{n + 3}, 0x00020000
    """)


def exec_mask(m32):
    A(f"""
    s_mov_b32 exec_lo, 0x{m32:08x}
    s_mov_b32 exec_hi, 0x{m32:08x}
    """)


def bf16r(dst, src):
    A(f"""
    v_cvt_pk_bf16_f32 v{dst}, v{src}, v{src}
    v_and_b32 v{dst}, 0xffff0000, v{dst}
    """)


def allreduce_x16(v, t, op):
    A(f"""
    v_mov_b32 v{t}, v{v}
    v_permlane16_swap_b32 v{v}, v{t}
    {op} v{v}, v{v}, v{t}
    """)


def allreduce_x32(v, t, op):
    A(f"""
    v_mov_b32 v{t}, v{v}
    v_permlane32_swap_b32 v{v}, v{t}
    {op} v{v}, v{v}, v{t}
    """)


def mk_tags():
    A(f"""
    s_add_u32 s{sT0}, s{sT0}, 1
    s_and_b32 s{sB0}, s{sT0}, 0xff
    s_bfe_u32 s{sB0 + 1}, s{sT0}, 0x80008
    s_bfe_u32 s{sB0 + 2}, s{sT0}, 0x80010
    s_lshr_b32 s{sB0 + 3}, s{sT0}, 24
    """)


def layernorm(raw, piv, xf, out, t):
    c = t + 16
    s1 = t + 18
    s2 = t + 20
    A(f"v_lshlrev_b32 v{c}, 16, v{piv}")
    for i in range(8):
        A(f"v_lshlrev_b32 v{t + 2 * i}, 16, v{raw + i}")
        A(f"v_and_b32 v{t + 2 * i + 1}, 0xffff0000, v{raw + i}")
    for i in range(8):
        A(f"v_pk_add_f32 {vr(t + 2 * i, 2)}, {vr(t + 2 * i, 2)}, {vr(c, 2)} op_sel_hi:[1,0] neg_lo:[0,1] neg_hi:[0,1]")
    A(f"v_pk_add_f32 {vr(s1, 2)}, {vr(t, 2)}, {vr(t + 2, 2)}")
    A(f"v_pk_mul_f32 {vr(s2, 2)}, {vr(t, 2)}, {vr(t, 2)}")
    A(f"v_pk_fma_f32 {vr(s2, 2)}, {vr(t + 2, 2)}, {vr(t + 2, 2)}, {vr(s2, 2)}")
    for i in range(2, 8):
        A(f"v_pk_add_f32 {vr(s1, 2)}, {vr(s1, 2)}, {vr(t + 2 * i, 2)}")
        A(f"v_pk_fma_f32 {vr(s2, 2)}, {vr(t + 2 * i, 2)}, {vr(t + 2 * i, 2)}, {vr(s2, 2)}")
    A(f"v_add_f32 v{s1}, v{s1}, v{s1 + 1}")
    A(f"v_add_f32 v{s2}, v{s2}, v{s2 + 1}")
    A(f"""
    v_permlane32_swap_b32 v{s1}, v{s2}
    v_add_f32 v{s1}, v{s1}, v{s2}
    """)
    for r in (2, 4, 8):
        A(f"v_add_f32_dpp v{s1}, v{s1}, v{s1} row_ror:{r} row_mask:0xf bank_mask:0xf")
    A(f"""
    v_mov_b32 v{s2}, v{s1}
    v_permlane16_swap_b32 v{s1}, v{s2}
    v_add_f32 v{s1}, v{s1}, v{s2}
    v_mul_f32 v{s1}, 0x3b000000, v{s1}
    v_mov_b32 v{s2}, v{s1}
    v_permlane32_swap_b32 v{s1}, v{s2}
    v_fma_f32 v{s2}, -v{s1}, v{s1}, v{s2}
    v_add_f32 v{s1}, v{s1}, v{c}
    v_max_f32 v{s2}, 0, v{s2}
    v_cvt_pk_bf16_f32 v{c}, v{s1}, v{s2}
    v_and_b32 v{s2}, 0xffff0000, v{c}
    v_lshlrev_b32 v{c}, 16, v{c}
    v_add_f32 v{s2}, 0x{EPS:08x}, v{s2}
    v_pk_add_f32 {vr(xf, 2)}, {vr(xf, 2)}, {vr(c, 2)} op_sel_hi:[1,0] neg_lo:[0,1] neg_hi:[0,1]
    v_pk_add_f32 {vr(xf + 2, 2)}, {vr(xf + 2, 2)}, {vr(c, 2)} op_sel_hi:[1,0] neg_lo:[0,1] neg_hi:[0,1]
    """)
    bf16r(s2, s2)
    A(f"""
    v_sqrt_f32 v{s2}, v{s2}
    v_cvt_pk_bf16_f32 v{out}, v{xf}, v{xf + 1}
    v_cvt_pk_bf16_f32 v{out + 1}, v{xf + 2}, v{xf + 3}
    """)
    bf16r(s2, s2)
    A(f"""
    v_rcp_f32 v{s2}, v{s2}
    v_lshlrev_b32 v{t}, 16, v{out}
    v_and_b32 v{t + 1}, 0xffff0000, v{out}
    v_lshlrev_b32 v{t + 2}, 16, v{out + 1}
    v_and_b32 v{t + 3}, 0xffff0000, v{out + 1}
    v_pk_mul_f32 {vr(t, 2)}, {vr(t, 2)}, {vr(s2, 2)} op_sel_hi:[1,0]
    v_pk_mul_f32 {vr(t + 2, 2)}, {vr(t + 2, 2)}, {vr(s2, 2)} op_sel_hi:[1,0]
    v_cvt_pk_bf16_f32 v{out}, v{t}, v{t + 1}
    v_cvt_pk_bf16_f32 v{out + 1}, v{t + 2}, v{t + 3}
    """)


def tagcheck24(acc, regs):
    allr = []
    for base in regs:
        for i in range(4):
            A(f"v_xor_b32 v{base + i}, s{sB0 + i}, v{base + i}")
            allr.append(base + i)
    A(f"v_or3_b32 v{acc}, v{allr[0]}, v{allr[1]}, v{allr[2]}")
    allr = allr[3:]
    while len(allr) >= 2:
        A(f"v_or3_b32 v{acc}, v{acc}, v{allr[0]}, v{allr[1]}")
        allr = allr[2:]
    if allr:
        A(f"v_or_b32 v{acc}, v{acc}, v{allr[0]}")


def poll_tail(label, acc, low8, sleep=0):
    if low8:
        A(f"v_and_b32 v{acc}, 0xff, v{acc}")
    done = label + "_done"
    A(f"""
    v_cmp_ne_u32 vcc, 0, v{acc}
    s_cmp_eq_u64 vcc, 0
    s_cbranch_scc1 {done}
    """)
    if sleep:
        A(f"s_sleep {sleep}")
    A(f"""
    s_add_u32 s{sITER}, s{sITER}, 1
    s_cmp_lt_u32 s{sITER}, {POLL_LIMIT}
    s_cbranch_scc1 {label}
    """)
    A.label(done)


def tagpack24(base, vmask):
    for i in range(4):
        A(f"v_bfi_b32 v{base + i}, v{vmask}, s{sB0 + i}, v{base + i}")


A.label(NAME + "_kernel")
A(f"""
s_cmp_ge_u32 s2, 256
s_cbranch_scc1 L_end
s_load_dwordx16 s[4:19], s[0:1], 0
s_load_dwordx4 s[20:23], s[0:1], 64
s_load_dwordx2 s[24:25], s[0:1], 80
""")
stamp(0)
A(f"""
v_lshrrev_b32 v1, 6, v0
v_and_b32 v0, 63, v0
v_readfirstlane_b32 s{sWV}, v1
s_and_b32 s{sG}, s2, 7
s_lshr_b32 s{sSLOT}, s2, 3
s_mov_b32 s{sL2E}, 0x{LOG2E:08x}
s_mov_b32 s{sITER}, 0
s_waitcnt lgkmcnt(0)
s_load_dword s{sT0}, s[24:25], 0
""")
mk_srd(SRD_WS, 24, WS_SIZE)
A(f"""
s_cmp_lt_u32 s{sSLOT}, 16
s_cbranch_scc1 L_gemv
""")

vK = 32
vVT = 64
vQ = 96
mk_srd(SRD_A, 6, 2 * 8 * 8192 * 256)
mk_srd(SRD_B, 8, 2 * 8 * 8192 * 256)
A(f"""
s_sub_u32 s64, s{sSLOT}, 16
s_lshr_b32 s65, s64, 3
s_and_b32 s66, s64, 7
s_lshl_b32 s67, s65, 3
s_add_u32 s67, s67, s{sG}
s_lshl_b32 s67, s67, 13
s_lshl_b32 s68, s66, 8
s_add_u32 s67, s67, s68
s_lshl_b32 s68, s{sWV}, 5
s_add_u32 s67, s67, s68
s_add_u32 s67, s67, 6144
s_lshl_b32 s67, s67, 8
s_add_u32 s68, s67, 4096
v_and_b32 v6, 15, v0
v_lshrrev_b32 v7, 4, v0
v_and_b32 v1, 7, v0
v_lshlrev_b32 v1, 8, v1
v_lshrrev_b32 v2, 3, v0
v_lshl_add_u32 v1, v2, 4, v1
""")
if WARM:
    A(f"""
    s_lshl_b32 s71, s{sG}, 1
    s_add_u32 s71, s71, s65
    s_lshl_b32 s72, s71, 12
    s_add_u32 s72, s72, {Q_OFF}
    v_lshlrev_b32 v21, 5, v0
    s_cmp_lg_u32 s{sWV}, 0
    s_cbranch_scc1 L_nowarmq
    buffer_load_dwordx4 {vr(vQ, 4)}, v21, {srd(SRD_WS)}, s72 offen sc1
    buffer_load_dwordx4 {vr(vQ + 4, 4)}, v21, {srd(SRD_WS)}, s72 offen offset:2048 sc1
    """)
    A.label("L_nowarmq")
for t in range(2):
    for hl in range(2):
        for rh in range(2):
            A(f"buffer_load_dwordx4 {vr(vK + ((t * 2 + hl) * 2 + rh) * 4, 4)}, v1, {srd(SRD_A)}, s{67 + t} offen offset:{rh * 2048 + hl * 128} nt")
A(f"""
v_lshrrev_b32 v2, 2, v6
v_xor_b32 v2, v2, v7
v_and_b32 v4, 3, v6
v_lshlrev_b32 v4, 4, v4
v_lshl_add_u32 v4, v7, 8, v4
v_lshl_add_u32 v2, v2, 6, v4
s_lshl_b32 s69, s{sWV}, 13
s_mov_b32 m0, s69
""")
for i in range(8):
    if i == 4:
        A(f"""
        s_add_u32 s70, s69, 4096
        s_mov_b32 m0, s70
        """)
    A(f"buffer_load_dwordx4 v2, {srd(SRD_B)}, s{67 + (i >> 2)} offen offset:{(i & 3) * 1024} nt lds")
A(f"""
v_lshrrev_b32 v4, 2, v0
v_and_b32 v4, 3, v4
v_lshrrev_b32 v5, 1, v7
v_xor_b32 v5, v5, v4
v_lshlrev_b32 v4, 8, v4
v_lshl_add_u32 v4, v5, 6, v4
v_and_b32 v5, 1, v7
v_lshl_add_u32 v4, v5, 5, v4
v_and_b32 v5, 3, v0
v_lshl_add_u32 v4, v5, 3, v4
v_add_u32 v4, s69, v4
v_xor_b32 v3, 0x80, v4
v_and_b32 v8, 1, v5
v_lshrrev_b32 v9, 1, v5
v_lshlrev_b32 v5, 9, v5
v_lshl_add_u32 v5, v8, 4, v5
v_lshl_add_u32 v5, v9, 7, v5
v_lshl_add_u32 v5, v7, 5, v5
v_add_u32 v5, {L_Q}, v5
v_and_b32 v8, 1, v7
v_lshrrev_b32 v9, 1, v7
v_lshlrev_b32 v22, 9, v7
v_lshl_add_u32 v22, v8, 4, v22
v_lshl_add_u32 v22, v9, 7, v22
v_lshl_add_u32 v22, v6, 4, v22
v_add_u32 v22, {L_Q}, v22
s_lshl_b32 s71, s{sG}, 1
s_add_u32 s71, s71, s65
s_lshl_b32 s72, s71, 12
s_add_u32 s72, s72, {Q_OFF}
v_lshlrev_b32 v21, 5, v0
v_mov_b32 v20, 0xff
s_waitcnt vmcnt(8) lgkmcnt(0)
""")
mk_tags()
stamp(1)
for th in range(4):
    X = vK + th * 8
    Y = X + 4
    for d in range(4):
        A(f"v_mov_b32 v{8 + d}, v{X + d}")
    for d in range(4):
        A(f"v_mov_b32_dpp v{X + d}, v{Y + d} row_ror:8 row_mask:0xf bank_mask:0xc")
    for d in range(4):
        A(f"v_mov_b32_dpp v{Y + d}, v{8 + d} row_ror:8 row_mask:0xf bank_mask:0x3")
A("s_waitcnt vmcnt(0)")
stamp(2)
for kq in range(8):
    A(f"ds_read_b64_tr_b16 {vr(vVT + kq * 4, 2)}, v4 offset:{kq * 1024}")
    A(f"ds_read_b64_tr_b16 {vr(vVT + kq * 4 + 2, 2)}, v3 offset:{kq * 1024}")
A(f"""
s_cmp_lg_u32 s{sWV}, 0
s_cbranch_scc1 L_qwait
""")
A.label("L_qpoll")
for i in range(4):
    A(f"buffer_load_dwordx4 {vr(vQ + 4 * i, 4)}, v21, {srd(SRD_WS)}, s72 offen offset:{(i >> 1) * 2048 + (i & 1) * 16} sc1")
A("s_waitcnt vmcnt(0)")
tagcheck24(23, [vQ, vQ + 4, vQ + 8, vQ + 12])
poll_tail("L_qpoll", 23, True, sleep=1)
for j in range(4):
    A(f"v_pk_add_f32 {vr(vQ + 2 * j, 2)}, {vr(vQ + 2 * j, 2)}, {vr(vQ + 8 + 2 * j, 2)}")
for j in range(4):
    A(f"v_cvt_pk_bf16_f32 v{24 + j}, v{vQ + 2 * j}, v{vQ + 2 * j + 1}")
A(f"""
ds_write_b128 v22, v[24:27]
s_waitcnt lgkmcnt(0)
""")
A.label("L_qwait")
A("s_barrier")
stamp(3)
for ks in range(4):
    hl, j = ks >> 1, ks & 1
    A(f"ds_read_b128 {vr(vQ + ks * 4, 4)}, v5 offset:{hl * 128 + j * 16}")
A("s_waitcnt lgkmcnt(0)")
for ks in range(4):
    for t in range(2):
        c = "0" if ks == 0 else vr(8 + 4 * t, 4)
        A(f"v_mfma_f32_16x16x32_bf16 {vr(8 + 4 * t, 4)}, {vr(vK + (t * 4 + ks) * 4, 4)}, {vr(vQ + ks * 4, 4)}, {c}")
A(f"s_mov_b32 s73, 0x{SCALE:08x}")
for i in range(4):
    A(f"v_cvt_pk_bf16_f32 v{16 + i}, v{8 + 2 * i}, v{9 + 2 * i}")
for i in range(4):
    A(f"v_lshlrev_b32 v{8 + 2 * i}, 16, v{16 + i}")
    A(f"v_and_b32 v{9 + 2 * i}, 0xffff0000, v{16 + i}")
for i in range(8):
    A(f"v_mul_f32 v{8 + i}, s73, v{8 + i}")
for i in range(4):
    A(f"v_cvt_pk_bf16_f32 v{16 + i}, v{8 + 2 * i}, v{9 + 2 * i}")
for i in range(4):
    A(f"v_lshlrev_b32 v{8 + 2 * i}, 16, v{16 + i}")
    A(f"v_and_b32 v{9 + 2 * i}, 0xffff0000, v{16 + i}")
A("""
v_max3_f32 v22, v8, v9, v10
v_max3_f32 v23, v11, v12, v13
v_max3_f32 v22, v22, v14, v15
v_max_f32 v22, v22, v23
""")
allreduce_x16(22, 23, "v_max_f32")
allreduce_x32(22, 23, "v_max_f32")
for i in range(8):
    A(f"v_sub_f32 v{8 + i}, v{8 + i}, v22")
for i in range(8):
    A(f"v_mul_f32 v{8 + i}, s{sL2E}, v{8 + i}")
for i in range(8):
    A(f"v_exp_f32 v{8 + i}, v{8 + i}")
for i in range(4):
    A(f"v_cvt_pk_bf16_f32 v{16 + i}, v{8 + 2 * i}, v{9 + 2 * i}")
for gq in range(4):
    for t in range(2):
        for hd in range(2):
            acc = vr(vK + (hd * 2 + t) * 4, 4)
            A(f"v_mfma_f32_4x4x4_16b_bf16 {acc}, {vr(16 + 2 * t, 2)}, {vr(vVT + (t * 4 + gq) * 4 + hd * 2, 2)}, {'0' if gq == 0 else acc} cbsz:4 abid:{4 * gq}")
A("""
v_pk_add_f32 v[8:9], v[8:9], v[10:11]
v_pk_add_f32 v[12:13], v[12:13], v[14:15]
v_pk_add_f32 v[8:9], v[8:9], v[12:13]
v_add_f32 v23, v8, v9
""")
allreduce_x16(23, 24, "v_add_f32")
allreduce_x32(23, 24, "v_add_f32")
A(f"""
v_lshlrev_b32 v25, 2, v0
v_add_u32 v25, s69, v25
v_lshlrev_b32 v24, 3, v0
v_add_u32 v24, s69, v24
v_pk_add_f32 {vr(vK, 2)}, {vr(vK, 2)}, {vr(vK + 4, 2)}
v_pk_add_f32 {vr(vK + 2, 2)}, {vr(vK + 2, 2)}, {vr(vK + 6, 2)}
v_pk_add_f32 {vr(vK + 8, 2)}, {vr(vK + 8, 2)}, {vr(vK + 12, 2)}
v_pk_add_f32 {vr(vK + 10, 2)}, {vr(vK + 10, 2)}, {vr(vK + 14, 2)}
""")
for r in range(4):
    A(f"ds_write2st64_b32 v25, v{vK + r}, v{vK + 8 + r} offset0:{2 * r} offset1:{2 * r + 1}")
A("""
s_mov_b64 exec, 15
ds_write_b64 v24, v[22:23] offset:2048
s_mov_b64 exec, -1
s_waitcnt lgkmcnt(0)
s_barrier
""")
stamp(4)
A(f"""
s_cmp_ge_u32 s{sWV}, 2
s_cbranch_scc1 L_att_done
s_lshl_b32 s73, s{sWV}, 1
v_lshrrev_b32 v1, 5, v0
v_add_u32 v1, s73, v1
v_and_b32 v2, 31, v0
v_lshlrev_b32 v3, 9, v1
v_lshl_add_u32 v3, v2, 4, v3
v_lshlrev_b32 v4, 3, v1
""")
for i in range(8):
    A(f"ds_read_b64 {vr(64 + 2 * i, 2)}, v4 offset:{i * 8192 + 2048}")
for i in range(8):
    A(f"ds_read_b128 {vr(32 + 4 * i, 4)}, v3 offset:{i * 8192}")
A(f"""
s_lshl_b32 s73, s71, 3
s_add_u32 s73, s73, s66
s_lshl_b32 s74, s73, 7
s_add_u32 s74, s74, {ML_OFF}
s_lshl_b32 s73, s73, 11
s_add_u32 s73, s73, {P_OFF}
v_lshlrev_b32 v5, 4, v1
s_waitcnt lgkmcnt({0 if STAMPS else 8})
v_max3_f32 v8, v64, v66, v68
v_max3_f32 v9, v70, v72, v74
v_max3_f32 v8, v8, v76, v78
v_max_f32 v8, v8, v9
""")
for i in range(8):
    A(f"v_sub_f32 v{64 + 2 * i}, v{64 + 2 * i}, v8")
for i in range(8):
    A(f"v_mul_f32 v{64 + 2 * i}, s{sL2E}, v{64 + 2 * i}")
for i in range(8):
    A(f"v_exp_f32 v{64 + 2 * i}, v{64 + 2 * i}")
A("v_mul_f32 v9, v64, v65")
for i in range(1, 8):
    A(f"v_fmac_f32 v9, v{64 + 2 * i}, v{65 + 2 * i}")
A("s_waitcnt lgkmcnt(0)")
A("""
v_pk_mul_f32 v[12:13], v[32:33], v[64:65] op_sel_hi:[1,0]
v_pk_mul_f32 v[14:15], v[34:35], v[64:65] op_sel_hi:[1,0]
""")
for i in range(1, 8):
    A(f"v_pk_fma_f32 v[12:13], {vr(32 + 4 * i, 2)}, {vr(64 + 2 * i, 2)}, v[12:13] op_sel_hi:[1,0,1]")
    A(f"v_pk_fma_f32 v[14:15], {vr(34 + 4 * i, 2)}, {vr(64 + 2 * i, 2)}, v[14:15] op_sel_hi:[1,0,1]")
tagpack24(12, 20)
A(f"""
buffer_store_dwordx4 v[12:15], v3, {srd(SRD_WS)}, s73 offen sc1
v_mov_b32 v10, s{sT0}
v_mov_b32 v11, s{sT0}
s_mov_b32 exec_lo, 1
s_mov_b32 exec_hi, 1
buffer_store_dwordx4 v[8:11], v5, {srd(SRD_WS)}, s74 offen sc1
s_mov_b64 exec, -1
""")
A.label("L_att_done")
stamp(5)
stamp_flush(6)
A("s_endpgm")

A.label("L_gemv")
vWA, vWB = 64, 96
vAC = 44
vXN = 60
vMSK = 41
vPIV = 42
vB, vG4, vC16, vQ2 = 4, 5, 6, 7
vTR, vDM = 62, 63
mk_srd(SRD_X, 4, 2048)
mk_srd(SRD_A, 10, 512 * 4096 * 2)
mk_srd(SRD_B, 12, 4096 * 512 * 2)
mk_srd(SRD_W1, 16, 512 * 1792 * 2)
mk_srd(SRD_W2, 18, 1792 * 512 * 2)
mk_srd(SRD_OUT, 20, 2048)
A(f"""
s_and_b32 s64, s{sSLOT}, 1
s_lshr_b32 s65, s{sSLOT}, 1
v_and_b32 v{vB}, 1, v0
v_lshrrev_b32 v{vG4}, 4, v0
v_lshrrev_b32 v{vC16}, 2, v0
v_bfe_u32 v{vQ2}, v0, 1, 1
v_lshlrev_b32 v1, 10, v{vB}
v_lshrrev_b32 v2, 1, v0
v_lshl_add_u32 v2, v2, 5, v1
v_lshl_add_u32 v3, v{vC16}, 3, v1
s_lshl_b32 s66, s64, 9
s_lshl_b32 s67, s{sWV}, 6
s_add_u32 s66, s66, s67
buffer_load_dwordx4 v[8:11], v2, {srd(SRD_X)}, 0 offen
buffer_load_dwordx4 v[12:15], v2, {srd(SRD_X)}, 0 offen offset:16
buffer_load_dword v{vPIV}, v1, {srd(SRD_X)}, 0 offen
buffer_load_dwordx2 v[16:17], v3, {srd(SRD_X)}, s66 offen
""")
A(f"""
v_and_b32 v{vDM}, 7, v0
v_and_b32 v18, 1, v{vG4}
v_lshlrev_b32 v18, 2, v18
v_xor_b32 v{vDM}, v{vDM}, v18
v_lshlrev_b32 v{vDM}, 4, v{vDM}
v_lshrrev_b32 v40, 3, v0
v_lshl_add_u32 v18, v40, 13, v{vDM}
s_lshl_b32 s68, s64, 21
s_lshl_b32 s69, s{sWV}, 18
s_add_u32 s68, s68, s69
s_lshl_b32 s69, s{sG}, 10
s_add_u32 s68, s68, s69
s_lshl_b32 s69, s65, 7
s_add_u32 s68, s68, s69
s_lshl_b32 s70, s{sWV}, 13
s_add_u32 s70, s70, {L_STG}
""")
for i in range(4):
    A(f"""
    s_add_u32 s71, s70, {i * 1024}
    s_mov_b32 m0, s71
    s_add_u32 s72, s68, {i * 8 * 8192}
    buffer_load_dwordx4 v18, {srd(SRD_A)}, s72 offen nt lds
    """)
A(f"""
v_and_b32 v19, 3, v{vC16}
v_lshrrev_b32 v20, 1, v19
v_lshrrev_b32 v21, 1, v{vG4}
v_xor_b32 v20, v20, v21
v_lshlrev_b32 v{vTR}, 7, v19
v_lshl_add_u32 v{vTR}, v20, 6, v{vTR}
v_and_b32 v21, 1, v{vG4}
v_lshl_add_u32 v{vTR}, v21, 5, v{vTR}
v_and_b32 v21, 3, v0
v_lshl_add_u32 v{vTR}, v21, 3, v{vTR}
v_add_u32 v{vTR}, s70, v{vTR}
v_mov_b32 v{vMSK}, 0xff
s_lshl_b32 s73, s{sWV}, 9
v_lshlrev_b32 v43, 2, v0
v_add_u32 v43, s73, v43
s_waitcnt vmcnt(4)
""")
stamp(1)
A(f"""
v_lshlrev_b32 v20, 16, v16
v_and_b32 v21, 0xffff0000, v16
v_lshlrev_b32 v22, 16, v17
v_and_b32 v23, 0xffff0000, v17
""")
layernorm(8, vPIV, 20, vXN, 96)
A("s_waitcnt vmcnt(0) lgkmcnt(0)")
mk_tags()
stamp(2)


def tr_reads(dst, n):
    for kq in range(n):
        A(f"ds_read_b64_tr_b16 {vr(dst + 2 * kq, 2)}, v{vTR} offset:{kq * 512}")


def gemv(w, n):
    for kq in range(n):
        acc = vr(vAC + 4 * (kq & 3), 4)
        A(f"v_mfma_f32_4x4x4_16b_bf16 {acc}, {vr(vXN, 2)}, {vr(w + 2 * kq, 2)}, {'0' if kq < 4 else acc} cbsz:4 abid:{kq}")
    A(f"""
    v_pk_add_f32 {vr(vAC, 2)}, {vr(vAC, 2)}, {vr(vAC + 4, 2)}
    v_pk_add_f32 {vr(vAC + 8, 2)}, {vr(vAC + 8, 2)}, {vr(vAC + 12, 2)}
    v_pk_add_f32 {vr(vAC, 2)}, {vr(vAC, 2)}, {vr(vAC + 8, 2)}
    """)


def red_sum(addr, lbase):
    for i in range(8):
        A(f"ds_read_b128 {vr(8 + 4 * i, 4)}, v{addr} offset:{lbase + i * 512}")
    A("s_waitcnt lgkmcnt(0)")
    for st in (16, 8, 4):
        for j in range(0, st, 2):
            A(f"v_pk_add_f32 {vr(8 + j, 2)}, {vr(8 + j, 2)}, {vr(8 + j + st, 2)}")


tr_reads(vWA, 8)
A("s_waitcnt lgkmcnt(0)")
gemv(vWA, 8)
A(f"""
ds_write2st64_b32 v43, v{vAC}, v{vAC + 1} offset0:{L_RED // 256} offset1:{L_RED // 256 + 1}
s_waitcnt lgkmcnt(0)
s_barrier
v_and_b32 v1, 31, v0
v_lshlrev_b32 v1, 4, v1
s_cmp_lg_u32 s{sWV}, 0
s_cbranch_scc1 L_q_pub_done
""")
red_sum(1, L_RED)
A(f"""
s_lshl_b32 s71, s{sG}, 13
s_lshl_b32 s72, s64, 11
s_add_u32 s71, s71, s72
s_lshl_b32 s72, s65, 8
s_add_u32 s71, s71, s72
s_add_u32 s71, s71, {Q_OFF}
v_and_b32 v12, 15, v0
v_lshlrev_b32 v12, 4, v12
v_lshl_add_u32 v12, v{vG4}, 12, v12
""")
tagpack24(8, vMSK)
A(f"""
s_mov_b32 exec_hi, 0
buffer_store_dwordx4 v[8:11], v12, {srd(SRD_WS)}, s71 offen sc1
s_mov_b64 exec, -1
""")
A.label("L_q_pub_done")
stamp(3)
A(f"""
s_cmp_ge_u32 s{sSLOT}, 8
s_cbranch_scc1 L_ffn_role
""")
A(f"""
v_lshl_add_u32 v18, v40, 10, v{vDM}
s_lshl_b32 s68, s{sG}, 19
s_lshl_b32 s69, s{sWV}, 16
s_add_u32 s68, s68, s69
s_lshl_b32 s69, s{sSLOT}, 7
s_add_u32 s68, s68, s69
""")
for i in range(8):
    A(f"""
    s_add_u32 s71, s70, {i * 1024}
    s_mov_b32 m0, s71
    s_add_u32 s72, s68, {i * 8 * 1024}
    buffer_load_dwordx4 v18, {srd(SRD_B)}, s72 offen nt lds
    """)
A(f"""
v_and_b32 v2, 15, v0
v_lshlrev_b32 v2, 4, v2
v_lshl_add_u32 v2, v{vG4}, 13, v2
s_lshl_b32 s4, s{sG}, 15
s_lshl_b32 s71, s{sWV}, 8
s_add_u32 s4, s4, s71
s_add_u32 s4, s4, {P_OFF}
s_add_u32 s5, s4, 4096
v_lshlrev_b32 v3, 9, v{vG4}
v_lshlrev_b32 v42, 7, v{vB}
v_lshl_add_u32 v42, v{vC16}, 2, v42
s_lshl_b32 s6, s{sG}, 11
s_lshr_b32 s73, s{sWV}, 1
s_lshl_b32 s73, s73, 4
s_add_u32 s6, s6, s73
s_add_u32 s6, s6, {ML_OFF}
""")
if WARM:
    for i in range(4):
        A(f"buffer_load_dwordx4 {vr(8 + 4 * i, 4)}, v2, {srd(SRD_WS)}, s{4 + (i >> 1)} offen offset:{2048 * (i & 1)} sc1")
    A("s_waitcnt vmcnt(4)")
else:
    A("s_waitcnt vmcnt(0)")
tr_reads(vWA, 16)
A("s_waitcnt lgkmcnt(0)")
stamp(4)
A.label("L_p_pre")
A(f"""
buffer_load_dwordx4 v[24:27], v3, {srd(SRD_WS)}, s6 offen sc1
s_waitcnt vmcnt(0)
v_cmp_eq_u32 vcc, s{sT0}, v26
s_cmp_lg_u64 vcc, 0
s_cbranch_scc1 L_p_poll
s_sleep 2
s_add_u32 s{sITER}, s{sITER}, 1
s_cmp_lt_u32 s{sITER}, {POLL_LIMIT}
s_cbranch_scc1 L_p_pre
""")
A.label("L_p_poll")
for i in range(4):
    A(f"buffer_load_dwordx4 {vr(24 + 4 * i, 4)}, v3, {srd(SRD_WS)}, s6 offen offset:{128 * i} sc1")
for i in range(4):
    A(f"buffer_load_dwordx4 {vr(8 + 4 * i, 4)}, v2, {srd(SRD_WS)}, s{4 + (i >> 1)} offen offset:{2048 * (i & 1)} sc1")
A("s_waitcnt vmcnt(0)")
tagcheck24(40, [8, 12, 16, 20])
A("v_and_b32 v40, 0xff, v40")
for i in range(4):
    A(f"v_bitop3_b32 v40, v{26 + 4 * i}, s{sT0}, v40 bitop3:0xbe")
poll_tail("L_p_poll", 40, False)
stamp(5)
A("""
v_max3_f32 v40, v24, v28, v32
v_max_f32 v40, v40, v36
""")
allreduce_x16(40, 48, "v_max_f32")
for i in range(4):
    A(f"v_sub_f32 v{24 + 4 * i}, v{24 + 4 * i}, v40")
for i in range(4):
    A(f"v_mul_f32 v{24 + 4 * i}, s{sL2E}, v{24 + 4 * i}")
for i in range(4):
    A(f"v_exp_f32 v{24 + 4 * i}, v{24 + 4 * i}")
A("""
v_mul_f32 v40, v24, v25
v_pk_mul_f32 v[44:45], v[8:9], v[24:25] op_sel_hi:[1,0]
v_pk_mul_f32 v[46:47], v[10:11], v[24:25] op_sel_hi:[1,0]
""")
for i in range(1, 4):
    A(f"v_fmac_f32 v40, v{24 + 4 * i}, v{25 + 4 * i}")
    A(f"v_pk_fma_f32 v[44:45], {vr(8 + 4 * i, 2)}, {vr(24 + 4 * i, 2)}, v[44:45] op_sel_hi:[1,0,1]")
    A(f"v_pk_fma_f32 v[46:47], {vr(10 + 4 * i, 2)}, {vr(24 + 4 * i, 2)}, v[46:47] op_sel_hi:[1,0,1]")
allreduce_x16(40, 48, "v_add_f32")
A(f"""
v_permlane16_swap_b32 v44, v46
v_permlane16_swap_b32 v45, v47
v_rcp_f32 v40, v40
v_pk_add_f32 v[44:45], v[44:45], v[46:47]
v_pk_mul_f32 v[44:45], v[44:45], v[40:41] op_sel_hi:[1,0]
v_cvt_pk_bf16_f32 v44, v44, v45
ds_bpermute_b32 v{vXN}, v42, v44
ds_bpermute_b32 v{vXN + 1}, v42, v44 offset:64
s_waitcnt lgkmcnt(0)
""")
gemv(vWA, 16)
A(f"""
ds_write2st64_b32 v43, v{vAC}, v{vAC + 1} offset0:{L_RED2 // 256} offset1:{L_RED2 // 256 + 1}
s_waitcnt lgkmcnt(0)
s_barrier
s_cmp_lg_u32 s{sWV}, 0
s_cbranch_scc1 L_o_done
""")
red_sum(1, L_RED2)
A(f"""
s_lshl_b32 s71, s{sG}, 12
s_lshl_b32 s72, s{sSLOT}, 8
s_add_u32 s71, s71, s72
s_add_u32 s71, s71, {A_OFF}
v_and_b32 v12, 15, v0
v_lshlrev_b32 v12, 4, v12
v_lshl_add_u32 v12, v{vG4}, 11, v12
""")
tagpack24(8, vMSK)
A(f"""
s_mov_b32 exec_hi, 0
buffer_store_dwordx4 v[8:11], v12, {srd(SRD_WS)}, s71 offen sc1
s_mov_b64 exec, -1
""")
A.label("L_o_done")
stamp(6)
stamp_flush(7)
A("s_endpgm")

A.label("L_ffn_role")
A(f"""
s_sub_u32 s64, s2, 64
s_cmp_ge_u32 s64, 28
s_cbranch_scc1 L_g_done
s_movk_i32 s65, 3584
v_mul_lo_u32 v18, v40, s65
v_add_u32 v18, v18, v{vDM}
s_mul_i32 s68, s{sWV}, {64 * 3584}
s_lshl_b32 s69, s64, 7
s_add_u32 s68, s68, s69
""")
for i in range(8):
    A(f"""
    s_add_u32 s71, s70, {i * 1024}
    s_mov_b32 m0, s71
    s_add_u32 s72, s68, {i * 8 * 3584}
    buffer_load_dwordx4 v18, {srd(SRD_W1)}, s72 offen nt lds
    """)
A(f"""
v_lshl_add_u32 v19, v40, 10, v{vDM}
s_lshl_b32 s68, s64, 16
s_lshl_b32 s69, s{sWV}, 7
s_add_u32 s68, s68, s69
""")
for i in range(8):
    A(f"""
    s_add_u32 s72, s68, {i * 8 * 1024}
    buffer_load_dwordx4 {vr(vWB + 4 * i, 4)}, v19, {srd(SRD_W2)}, s72 offen nt
    """)
A(f"""
v_add_u32 v3, s69, v3
v_and_b32 v20, 15, v0
v_and_b32 v21, 1, v{vG4}
v_lshrrev_b32 v22, 1, v{vG4}
v_lshlrev_b32 v39, 10, v22
v_lshl_add_u32 v39, v20, 3, v39
v_lshl_add_u32 v39, v21, 2, v39
v_add_u32 v39, s69, v39
buffer_load_dword v38, v39, {srd(SRD_X)}, 0 offen
v_lshlrev_b32 v36, 14, v21
v_lshl_add_u32 v36, v22, 11, v36
v_lshl_add_u32 v36, v20, 4, v36
s_lshl_b32 s8, s{sWV}, 8
s_add_u32 s8, s8, {A_OFF}
s_add_u32 s9, s8, 4096
s_add_u32 s10, s8, 8192
s_add_u32 s11, s8, 12288
v_lshlrev_b32 v37, 4, v0
v_add_u32 v37, s70, v37
""")
if WARM:
    for i in range(4):
        A(f"buffer_load_dwordx4 {vr(8 + 4 * i, 4)}, v36, {srd(SRD_WS)}, s{8 + i} offen sc1")
    A(f"""
    s_and_b32 s71, s64, 15
    s_lshl_b32 s71, s71, 3
    s_add_u32 s71, s71, s{sWV}
    s_lshl_b32 s72, s71, 5
    s_add_u32 s72, s72, {F_OFF}
    v_lshrrev_b32 v28, 1, v0
    v_min_u32 v28, 27, v28
    v_lshlrev_b32 v28, 12, v28
    v_lshl_add_u32 v28, v{vB}, 4, v28
    buffer_load_dwordx4 v[24:27], v28, {srd(SRD_WS)}, s72 offen sc1
    s_waitcnt vmcnt(14)
    """)
else:
    A("s_waitcnt vmcnt(9)")
tr_reads(vWA, 16)
A(f"s_waitcnt vmcnt({5 if WARM else 0}) lgkmcnt(0)")
for i in range(8):
    A(f"ds_write_b128 v37, {vr(vWB + 4 * i, 4)} offset:{i * 1024}")
A("s_waitcnt lgkmcnt(0)")
tr_reads(vWB, 16)
A(f"""
v_lshlrev_b32 v1, 10, v{vB}
s_waitcnt lgkmcnt(0)
""")
stamp(4)
A.label("L_a_pre")
A(f"""
buffer_load_dwordx4 v[8:11], v36, {srd(SRD_WS)}, s8 offen sc1
s_waitcnt vmcnt(0)
""")
tagcheck24(40, [8])
A(f"""
v_and_b32 v40, 0xff, v40
v_cmp_eq_u32 vcc, 0, v40
s_cmp_lg_u64 vcc, 0
s_cbranch_scc1 L_a_poll
s_sleep 2
s_add_u32 s{sITER}, s{sITER}, 1
s_cmp_lt_u32 s{sITER}, {POLL_LIMIT}
s_cbranch_scc1 L_a_pre
""")
A.label("L_a_poll")
for i in range(4):
    A(f"buffer_load_dwordx4 {vr(8 + 4 * i, 4)}, v36, {srd(SRD_WS)}, s{8 + i} offen sc1")
A("s_waitcnt vmcnt(0)")
tagcheck24(40, [8, 12, 16, 20])
poll_tail("L_a_poll", 40, True)
stamp(5)
A(f"""
v_pk_add_f32 v[8:9], v[8:9], v[12:13]
v_pk_add_f32 v[10:11], v[10:11], v[14:15]
v_pk_add_f32 v[16:17], v[16:17], v[20:21]
v_pk_add_f32 v[18:19], v[18:19], v[22:23]
v_pk_add_f32 v[8:9], v[8:9], v[16:17]
v_pk_add_f32 v[10:11], v[10:11], v[18:19]
v_lshlrev_b32 v12, 16, v38
v_and_b32 v13, 0xffff0000, v38
v_permlane16_swap_b32 v8, v10
v_permlane16_swap_b32 v9, v11
v_pk_add_f32 v[8:9], v[8:9], v[10:11]
v_cvt_pk_bf16_f32 v16, v8, v9
v_lshlrev_b32 v8, 16, v16
v_and_b32 v9, 0xffff0000, v16
v_pk_add_f32 v[8:9], v[8:9], v[12:13]
v_cvt_pk_bf16_f32 v16, v8, v9
ds_write_b32 v39, v16 offset:{L_H}
v_lshlrev_b32 v40, 8, v{vB}
v_lshl_add_u32 v40, v{vC16}, 4, v40
s_waitcnt lgkmcnt(0)
s_barrier
ds_read_b128 v[8:11], v2 offset:{L_H}
ds_read_b128 v[12:15], v2 offset:{L_H + 16}
ds_read_b32 v{vPIV}, v1 offset:{L_H}
ds_read_b64 v[38:39], v3 offset:{L_H}
s_waitcnt lgkmcnt(0)
v_lshlrev_b32 v56, 16, v38
v_and_b32 v57, 0xffff0000, v38
v_lshlrev_b32 v58, 16, v39
v_and_b32 v59, 0xffff0000, v39
""")
stamp(6)
layernorm(8, vPIV, 56, vXN, 16)
gemv(vWA, 16)
A(f"""
ds_write2st64_b32 v43, v{vAC}, v{vAC + 1} offset0:{L_RED2 // 256} offset1:{L_RED2 // 256 + 1}
s_waitcnt lgkmcnt(0)
s_barrier
""")
stamp(7)
red_sum(40, L_RED2)
A(f"""
v_cvt_pk_bf16_f32 v12, v8, v9
v_cvt_pk_bf16_f32 v13, v10, v11
v_lshlrev_b32 v8, 16, v12
v_and_b32 v9, 0xffff0000, v12
v_lshlrev_b32 v10, 16, v13
v_and_b32 v11, 0xffff0000, v13
""")
for i in range(4):
    A(f"v_mul_f32 v{12 + i}, s{sL2E}, v{8 + i}")
for i in range(4):
    A(f"v_exp_f32 v{12 + i}, -v{12 + i}")
for i in range(4):
    A(f"v_add_f32 v{12 + i}, 1.0, v{12 + i}")
for i in range(4):
    A(f"v_rcp_f32 v{12 + i}, v{12 + i}")
A(f"""
v_pk_mul_f32 v[8:9], v[8:9], v[12:13]
v_pk_mul_f32 v[10:11], v[10:11], v[14:15]
v_cvt_pk_bf16_f32 v{vXN}, v8, v9
v_cvt_pk_bf16_f32 v{vXN + 1}, v10, v11
""")
gemv(vWB, 16)
A(f"""
v_lshlrev_b32 v12, 3, v0
s_lshl_b32 s71, s64, 12
s_lshl_b32 s72, s{sWV}, 9
s_add_u32 s71, s71, s72
s_add_u32 s71, s71, {F_OFF}
v_mov_b32_dpp v{vAC + 2}, v{vAC} quad_perm:[1,1,3,3] row_mask:0xf bank_mask:0xf
v_mov_b32_dpp v{vAC + 3}, v{vAC + 1} quad_perm:[1,1,3,3] row_mask:0xf bank_mask:0xf
""")
tagpack24(vAC, vMSK)
exec_mask(0x55555555)
A(f"""
buffer_store_dwordx4 {vr(vAC, 4)}, v12, {srd(SRD_WS)}, s71 offen sc1
s_mov_b64 exec, -1
""")
stamp(8)
A(f"""
s_cmp_ge_u32 s64, 16
s_cbranch_scc1 L_g_done
s_lshl_b32 s71, s64, 3
s_add_u32 s71, s71, s{sWV}
s_lshl_b32 s72, s71, 5
s_add_u32 s72, s72, {F_OFF}
v_lshrrev_b32 v12, 1, v0
v_min_u32 v13, 27, v12
v_lshlrev_b32 v13, 12, v13
v_lshl_add_u32 v13, v{vB}, 4, v13
v_cmp_gt_u32 s[12:13], 28, v12
v_lshrrev_b32 v14, 1, v{vG4}
v_lshlrev_b32 v14, 10, v14
v_and_b32 v15, 1, v{vG4}
v_lshl_add_u32 v14, v15, 1, v14
v_lshl_add_u32 v14, v{vB}, 2, v14
s_lshl_b32 s73, s71, 3
v_add_u32 v14, s73, v14
s_mov_b32 s{sITER}, 0
ds_read_u16 v15, v14 offset:{L_H}
""")
A.label("L_f_poll")
A(f"""
buffer_load_dwordx4 v[8:11], v13, {srd(SRD_WS)}, s72 offen sc1
s_waitcnt vmcnt(0)
""")
tagcheck24(40, [8])
poll_tail("L_f_poll", 40, True)
stamp(9)
for j in range(4):
    A(f"v_cndmask_b32 v{8 + j}, 0, v{8 + j}, s[12:13]")
A(f"""
v_permlane32_swap_b32 v8, v9
v_permlane32_swap_b32 v10, v11
v_add_f32 v8, v8, v9
v_add_f32 v10, v10, v11
v_permlane16_swap_b32 v8, v10
v_add_f32 v8, v8, v10
""")
for r in (2, 4, 8):
    A(f"v_add_f32_dpp v8, v8, v8 row_ror:{r} row_mask:0xf bank_mask:0xf")
bf16r(8, 8)
A(f"""
s_waitcnt lgkmcnt(0)
v_lshlrev_b32 v15, 16, v15
v_add_f32 v8, v8, v15
v_cvt_pk_bf16_f32 v8, v8, v8
""")
exec_mask(0x00030003)
A(f"""
buffer_store_short v8, v14, {srd(SRD_OUT)}, 0 offen
s_cmp_lg_u32 s71, 0
s_cbranch_scc1 L_no_epoch
s_mov_b64 exec, 1
v_mov_b32 v9, 0
v_mov_b32 v10, s{sT0}
buffer_store_dword v10, v9, {srd(SRD_WS)}, 0 offen
""")
A.label("L_no_epoch")
A("s_mov_b64 exec, -1")
A.label("L_g_done")
stamp(10)
stamp_flush(11)
A.label("L_end")
A("s_endpgm")

hdr = open("cdna_kernels/%s.s.ref" % NAME).read().split("; Override")[0]
src = hdr + f"""; @launch grid=(256,1,1) block=(512,1,1) lds={LDS_SIZE}
.amdgcn_target "amdgcn-amd-amdhsa--gfx950"
.text
.globl {NAME}_kernel
.p2align 8
.type {NAME}_kernel,@function
""" + A.text() + f""".section .rodata,"a"
.p2align 6
.amdhsa_kernel {NAME}_kernel
  .amdhsa_next_free_vgpr 128
  .amdhsa_next_free_sgpr 102
  .amdhsa_accum_offset 128
  .amdhsa_group_segment_fixed_size 0
  .amdhsa_kernarg_size 88
  .amdhsa_user_sgpr_count 2
  .amdhsa_user_sgpr_kernarg_segment_ptr 1
  .amdhsa_system_sgpr_workgroup_id_x 1
.end_amdhsa_kernel
"""
open(OUT, "w").write(src)
print("wrote", OUT, len(src), "bytes")
```

```python
import sys
import struct
from asmlib import Asm

NAME = "sequential_preLN__sliding_block_cached__dense_activation_silu__decode"
STAMPS = "--stamps" in sys.argv
WARM = "--warm" in sys.argv
DBG = "--dbg" in sys.argv
PSLEEP = 0
for a in sys.argv[1:]:
    if a.startswith("--psleep="):
        PSLEEP = int(a[9:])
if DBG:
    STAMPS = True
OUT = "cdna_kernels/%s.s" % NAME
for a in sys.argv[1:]:
    if a.startswith("--out="):
        OUT = a[6:]

Q_OFF = 4096
P_OFF = Q_OFF + 131072
ML_OFF = P_OFF + 262144
A_OFF = ML_OFF + 16384
F_OFF = A_OFF + 32768
WS_END = F_OFF + 28 * 4096
ST_OFF = 1 << 20
WS_SIZE = ST_OFF + 2048 * 128 if STAMPS else WS_END
POLL_LIMIT = 1 << 17

L_RED = 0
L_RED2 = 4096
L_H = 8192
L_STG = 10240
LDS_SIZE = L_STG + 65536
L_Q = 65536


def f32bits(x):
    return struct.unpack("<I", struct.pack("<f", x))[0]


LOG2E = f32bits(1.4426950408889634)
SCALE = f32bits(128 ** -0.5)
EPS = f32bits(1e-5)

sWV, sG, sSLOT, sT0 = 26, 27, 28, 29
sB0 = 30
sITER = 34
sL2E = 35
sTMP = 3
SRD_WS, SRD_A, SRD_B, SRD_X, SRD_W1, SRD_W2, SRD_OUT = 36, 40, 44, 48, 52, 56, 60
sST = 76

A = Asm()
nstamp = [0]


def srd(n):
    return f"s[{n}:{n + 3}]"


def vr(a, n):
    return f"v[{a}:{a + n - 1}]"


def stamp(idx):
    if STAMPS:
        A(f"s_memrealtime s[{sST + 2 * idx}:{sST + 2 * idx + 1}]")


def stamp_flush(nst, dmap=None):
    if not STAMPS:
        return
    if DBG:
        if nst != 11:
            return
        A(f"""
        s_waitcnt lgkmcnt(0)
        s_cmp_lg_u32 s71, 0
        s_cbranch_scc1 L_nodbg
        s_mov_b64 exec, 1
        s_mov_b32 s40, s22
        s_mov_b32 s41, s23
        s_mov_b32 s42, 256
        s_mov_b32 s43, 0x00020000
        v_mov_b32 v1, 0
        """)
        for st in range(11):
            A(f"""
            s_sub_u32 s{sTMP}, s{sST + 2 * st}, s{sST}
            v_mov_b32 v2, s{sTMP}
            buffer_store_dword v2, v1, s[40:43], 0 offen offset:{4 * st}
            s_nop 1
            """)
        A("s_mov_b64 exec, -1")
        A.label("L_nodbg")
        return
    A(f"""
    s_waitcnt lgkmcnt(0)
    s_mov_b64 exec, 1
    s_lshl_b32 s{sTMP}, s2, 3
    s_add_u32 s{sTMP}, s{sTMP}, s{sWV}
    s_lshl_b32 s{sTMP}, s{sTMP}, 7
    s_add_u32 s{sTMP}, s{sTMP}, {ST_OFF}
    v_mov_b32 v1, 0
    """)
    for i in range(nst):
        A(f"""
        v_mov_b32 v2, s{sST + 2 * i}
        v_mov_b32 v3, s{sST + 2 * i + 1}
        buffer_store_dwordx2 v[2:3], v1, {srd(SRD_WS)}, s{sTMP} offen offset:{8 * i}
        s_nop 1
        """)
    A("s_mov_b64 exec, -1")


def mk_srd(n, ptr, size):
    A(f"""
    s_mov_b32 s{n}, s{ptr}
    s_mov_b32 s{n + 1}, s{ptr + 1}
    s_mov_b32 s{n + 2}, {size}
    s_mov_b32 s{n + 3}, 0x00020000
    """)


def exec_mask(m32):
    A(f"""
    s_mov_b32 exec_lo, 0x{m32:08x}
    s_mov_b32 exec_hi, 0x{m32:08x}
    """)


def bf16r(dst, src):
    A(f"""
    v_cvt_pk_bf16_f32 v{dst}, v{src}, v{src}
    v_and_b32 v{dst}, 0xffff0000, v{dst}
    """)


def allreduce_x16(v, t, op):
    A(f"""
    v_mov_b32 v{t}, v{v}
    v_permlane16_swap_b32 v{v}, v{t}
    {op} v{v}, v{v}, v{t}
    """)


def allreduce_x32(v, t, op):
    A(f"""
    v_mov_b32 v{t}, v{v}
    v_permlane32_swap_b32 v{v}, v{t}
    {op} v{v}, v{v}, v{t}
    """)


def mk_tags():
    A(f"""
    s_add_u32 s{sT0}, s{sT0}, 1
    s_and_b32 s{sB0}, s{sT0}, 0xff
    s_bfe_u32 s{sB0 + 1}, s{sT0}, 0x80008
    s_bfe_u32 s{sB0 + 2}, s{sT0}, 0x80010
    s_lshr_b32 s{sB0 + 3}, s{sT0}, 24
    """)


def layernorm(raw, piv, xf, out, t):
    c = t + 16
    s1 = t + 18
    s2 = t + 20
    A(f"v_lshlrev_b32 v{c}, 16, v{piv}")
    for i in range(8):
        A(f"v_lshlrev_b32 v{t + 2 * i}, 16, v{raw + i}")
        A(f"v_and_b32 v{t + 2 * i + 1}, 0xffff0000, v{raw + i}")
    for i in range(8):
        A(f"v_pk_add_f32 {vr(t + 2 * i, 2)}, {vr(t + 2 * i, 2)}, {vr(c, 2)} op_sel_hi:[1,0] neg_lo:[0,1] neg_hi:[0,1]")
    A(f"v_pk_add_f32 {vr(s1, 2)}, {vr(t, 2)}, {vr(t + 2, 2)}")
    A(f"v_pk_mul_f32 {vr(s2, 2)}, {vr(t, 2)}, {vr(t, 2)}")
    A(f"v_pk_fma_f32 {vr(s2, 2)}, {vr(t + 2, 2)}, {vr(t + 2, 2)}, {vr(s2, 2)}")
    for i in range(2, 8):
        A(f"v_pk_add_f32 {vr(s1, 2)}, {vr(s1, 2)}, {vr(t + 2 * i, 2)}")
        A(f"v_pk_fma_f32 {vr(s2, 2)}, {vr(t + 2 * i, 2)}, {vr(t + 2 * i, 2)}, {vr(s2, 2)}")
    A(f"v_add_f32 v{s1}, v{s1}, v{s1 + 1}")
    A(f"v_add_f32 v{s2}, v{s2}, v{s2 + 1}")
    A(f"""
    v_permlane32_swap_b32 v{s1}, v{s2}
    v_add_f32 v{s1}, v{s1}, v{s2}
    """)
    for r in (2, 4, 8):
        A(f"v_add_f32_dpp v{s1}, v{s1}, v{s1} row_ror:{r} row_mask:0xf bank_mask:0xf")
    A(f"""
    v_mov_b32 v{s2}, v{s1}
    v_permlane16_swap_b32 v{s1}, v{s2}
    v_add_f32 v{s1}, v{s1}, v{s2}
    v_mul_f32 v{s1}, 0x3b000000, v{s1}
    v_mov_b32 v{s2}, v{s1}
    v_permlane32_swap_b32 v{s1}, v{s2}
    v_fma_f32 v{s2}, -v{s1}, v{s1}, v{s2}
    v_add_f32 v{s1}, v{s1}, v{c}
    v_max_f32 v{s2}, 0, v{s2}
    v_cvt_pk_bf16_f32 v{c}, v{s1}, v{s2}
    v_and_b32 v{s2}, 0xffff0000, v{c}
    v_lshlrev_b32 v{c}, 16, v{c}
    v_add_f32 v{s2}, 0x{EPS:08x}, v{s2}
    v_pk_add_f32 {vr(xf, 2)}, {vr(xf, 2)}, {vr(c, 2)} op_sel_hi:[1,0] neg_lo:[0,1] neg_hi:[0,1]
    v_pk_add_f32 {vr(xf + 2, 2)}, {vr(xf + 2, 2)}, {vr(c, 2)} op_sel_hi:[1,0] neg_lo:[0,1] neg_hi:[0,1]
    """)
    bf16r(s2, s2)
    A(f"""
    v_sqrt_f32 v{s2}, v{s2}
    v_cvt_pk_bf16_f32 v{out}, v{xf}, v{xf + 1}
    v_cvt_pk_bf16_f32 v{out + 1}, v{xf + 2}, v{xf + 3}
    """)
    bf16r(s2, s2)
    A(f"""
    v_rcp_f32 v{s2}, v{s2}
    v_lshlrev_b32 v{t}, 16, v{out}
    v_and_b32 v{t + 1}, 0xffff0000, v{out}
    v_lshlrev_b32 v{t + 2}, 16, v{out + 1}
    v_and_b32 v{t + 3}, 0xffff0000, v{out + 1}
    v_pk_mul_f32 {vr(t, 2)}, {vr(t, 2)}, {vr(s2, 2)} op_sel_hi:[1,0]
    v_pk_mul_f32 {vr(t + 2, 2)}, {vr(t + 2, 2)}, {vr(s2, 2)} op_sel_hi:[1,0]
    v_cvt_pk_bf16_f32 v{out}, v{t}, v{t + 1}
    v_cvt_pk_bf16_f32 v{out + 1}, v{t + 2}, v{t + 3}
    """)


def tagcheck24(acc, regs):
    allr = []
    for base in regs:
        for i in range(4):
            A(f"v_xor_b32 v{base + i}, s{sB0 + i}, v{base + i}")
            allr.append(base + i)
    A(f"v_or3_b32 v{acc}, v{allr[0]}, v{allr[1]}, v{allr[2]}")
    allr = allr[3:]
    while len(allr) >= 2:
        A(f"v_or3_b32 v{acc}, v{acc}, v{allr[0]}, v{allr[1]}")
        allr = allr[2:]
    if allr:
        A(f"v_or_b32 v{acc}, v{acc}, v{allr[0]}")


def poll_tail(label, acc, low8, sleep=0):
    if low8:
        A(f"v_and_b32 v{acc}, 0xff, v{acc}")
    done = label + "_done"
    A(f"""
    v_cmp_ne_u32 vcc, 0, v{acc}
    s_cmp_eq_u64 vcc, 0
    s_cbranch_scc1 {done}
    """)
    if sleep:
        A(f"s_sleep {sleep}")
    A(f"""
    s_add_u32 s{sITER}, s{sITER}, 1
    s_cmp_lt_u32 s{sITER}, {POLL_LIMIT}
    s_cbranch_scc1 {label}
    """)
    A.label(done)


def tagpack24(base, vmask):
    for i in range(4):
        A(f"v_bfi_b32 v{base + i}, v{vmask}, s{sB0 + i}, v{base + i}")


A.label(NAME + "_kernel")
A(f"""
s_cmp_ge_u32 s2, 256
s_cbranch_scc1 L_end
s_load_dwordx16 s[4:19], s[0:1], 0
s_load_dwordx4 s[20:23], s[0:1], 64
s_load_dwordx2 s[24:25], s[0:1], 80
""")
stamp(0)
A(f"""
v_lshrrev_b32 v1, 6, v0
v_and_b32 v0, 63, v0
v_readfirstlane_b32 s{sWV}, v1
s_and_b32 s{sG}, s2, 7
s_lshr_b32 s{sSLOT}, s2, 3
s_mov_b32 s{sL2E}, 0x{LOG2E:08x}
s_mov_b32 s{sITER}, 0
s_waitcnt lgkmcnt(0)
s_load_dword s{sT0}, s[24:25], 0
""")
mk_srd(SRD_WS, 24, WS_SIZE)
A(f"""
s_cmp_lt_u32 s{sSLOT}, 16
s_cbranch_scc1 L_gemv
""")

vK = 32
vVT = 64
vQ = 96
mk_srd(SRD_A, 6, 2 * 8 * 8192 * 256)
mk_srd(SRD_B, 8, 2 * 8 * 8192 * 256)
A(f"""
s_sub_u32 s64, s{sSLOT}, 16
s_lshr_b32 s65, s64, 3
s_and_b32 s66, s64, 7
s_lshl_b32 s67, s65, 3
s_add_u32 s67, s67, s{sG}
s_lshl_b32 s67, s67, 13
s_lshl_b32 s68, s66, 8
s_add_u32 s67, s67, s68
s_lshl_b32 s68, s{sWV}, 5
s_add_u32 s67, s67, s68
s_add_u32 s67, s67, 6144
s_lshl_b32 s67, s67, 8
s_add_u32 s68, s67, 4096
v_and_b32 v6, 15, v0
v_lshrrev_b32 v7, 4, v0
v_and_b32 v1, 7, v0
v_lshlrev_b32 v1, 8, v1
v_lshrrev_b32 v2, 3, v0
v_lshl_add_u32 v1, v2, 4, v1
""")
if WARM:
    A(f"""
    s_lshl_b32 s71, s{sG}, 1
    s_add_u32 s71, s71, s65
    s_lshl_b32 s72, s71, 12
    s_add_u32 s72, s72, {Q_OFF}
    v_lshlrev_b32 v21, 5, v0
    s_cmp_lg_u32 s{sWV}, 0
    s_cbranch_scc1 L_nowarmq
    buffer_load_dwordx4 {vr(vQ, 4)}, v21, {srd(SRD_WS)}, s72 offen sc1
    buffer_load_dwordx4 {vr(vQ + 4, 4)}, v21, {srd(SRD_WS)}, s72 offen offset:2048 sc1
    """)
    A.label("L_nowarmq")
for t in range(2):
    for hl in range(2):
        for rh in range(2):
            A(f"buffer_load_dwordx4 {vr(vK + ((t * 2 + hl) * 2 + rh) * 4, 4)}, v1, {srd(SRD_A)}, s{67 + t} offen offset:{rh * 2048 + hl * 128} nt")
A(f"""
v_lshrrev_b32 v2, 2, v6
v_xor_b32 v2, v2, v7
v_and_b32 v4, 3, v6
v_lshlrev_b32 v4, 4, v4
v_lshl_add_u32 v4, v7, 8, v4
v_lshl_add_u32 v2, v2, 6, v4
s_lshl_b32 s69, s{sWV}, 13
s_mov_b32 m0, s69
""")
for i in range(8):
    if i == 4:
        A(f"""
        s_add_u32 s70, s69, 4096
        s_mov_b32 m0, s70
        """)
    A(f"buffer_load_dwordx4 v2, {srd(SRD_B)}, s{67 + (i >> 2)} offen offset:{(i & 3) * 1024} nt lds")
A(f"""
v_lshrrev_b32 v4, 2, v0
v_and_b32 v4, 3, v4
v_lshrrev_b32 v5, 1, v7
v_xor_b32 v5, v5, v4
v_lshlrev_b32 v4, 8, v4
v_lshl_add_u32 v4, v5, 6, v4
v_and_b32 v5, 1, v7
v_lshl_add_u32 v4, v5, 5, v4
v_and_b32 v5, 3, v0
v_lshl_add_u32 v4, v5, 3, v4
v_add_u32 v4, s69, v4
v_xor_b32 v3, 0x80, v4
v_and_b32 v8, 1, v5
v_lshrrev_b32 v9, 1, v5
v_lshlrev_b32 v5, 9, v5
v_lshl_add_u32 v5, v8, 4, v5
v_lshl_add_u32 v5, v9, 7, v5
v_lshl_add_u32 v5, v7, 5, v5
v_add_u32 v5, {L_Q}, v5
v_and_b32 v8, 1, v7
v_lshrrev_b32 v9, 1, v7
v_lshlrev_b32 v22, 9, v7
v_lshl_add_u32 v22, v8, 4, v22
v_lshl_add_u32 v22, v9, 7, v22
v_lshl_add_u32 v22, v6, 4, v22
v_add_u32 v22, {L_Q}, v22
s_lshl_b32 s71, s{sG}, 1
s_add_u32 s71, s71, s65
s_lshl_b32 s72, s71, 13
s_add_u32 s72, s72, {Q_OFF}
s_add_u32 s73, s72, 4096
v_lshlrev_b32 v21, 4, v0
v_lshlrev_b32 v22, 2, v0
v_add_u32 v22, {L_Q}, v22
v_mov_b32 v20, 0xff
s_waitcnt lgkmcnt(0)
""")
mk_tags()
A(f"""
s_cmp_lg_u32 s{sWV}, 0
s_cbranch_scc1 L_qwait
""")
A.label("L_qpoll")
for kh in range(2):
    for i4 in range(4):
        A(f"buffer_load_dwordx4 {vr(vVT + kh * 16 + 4 * i4, 4)}, v21, {srd(SRD_WS)}, s{72 + kh} offen offset:{i4 * 1024} sc1")
A("s_waitcnt vmcnt(0)")
for i2 in range(16):
    if i2 == 0:
        A(f"v_xor_b32 v23, s{sT0}, v{vVT + 1}")
    else:
        A(f"v_bitop3_b32 v23, v{vVT + 2 * i2 + 1}, s{sT0}, v23 bitop3:0xbe")
poll_tail("L_qpoll", 23, False, sleep=1)
for j2 in range(8):
    A(f"v_add_f32 v{vVT + 2 * j2}, v{vVT + 2 * j2}, v{vVT + 16 + 2 * j2}")
for j2 in range(4):
    A(f"v_cvt_pk_bf16_f32 v{24 + j2}, v{vVT + 4 * j2}, v{vVT + 4 * j2 + 2}")
for h in range(4):
    A(f"ds_write_b32 v22, v{24 + h} offset:{h * 512 + (h & 1) * 16 + (h >> 1) * 128}")
A("s_waitcnt lgkmcnt(0)")
A.label("L_qwait")
A("s_barrier")
stamp(1)
for ks in range(4):
    hl, j2 = ks >> 1, ks & 1
    A(f"ds_read_b128 {vr(vQ + ks * 4, 4)}, v5 offset:{hl * 128 + j2 * 16}")
A("s_waitcnt vmcnt(8)")
stamp(2)
for th in range(4):
    X = vK + th * 8
    Y = X + 4
    for d in range(4):
        A(f"v_mov_b32 v{8 + d}, v{X + d}")
    for d in range(4):
        A(f"v_mov_b32_dpp v{X + d}, v{Y + d} row_ror:8 row_mask:0xf bank_mask:0xc")
    for d in range(4):
        A(f"v_mov_b32_dpp v{Y + d}, v{8 + d} row_ror:8 row_mask:0xf bank_mask:0x3")
A("s_waitcnt lgkmcnt(0)")
for ks in range(4):
    for t in range(2):
        c = "0" if ks == 0 else vr(8 + 4 * t, 4)
        A(f"v_mfma_f32_16x16x32_bf16 {vr(8 + 4 * t, 4)}, {vr(vK + (t * 4 + ks) * 4, 4)}, {vr(vQ + ks * 4, 4)}, {c}")
L_M = L_Q + 2048
A(f"""
s_mov_b32 s73, 0x{SCALE:08x}
v_and_b32 v24, 3, v0
v_lshlrev_b32 v24, 5, v24
v_add_u32 v24, {L_M}, v24
s_lshl_b32 s74, s{sWV}, 2
v_add_u32 v25, s74, v24
""")
for i2 in range(4):
    A(f"v_cvt_pk_bf16_f32 v{16 + i2}, v{8 + 2 * i2}, v{9 + 2 * i2}")
for i2 in range(4):
    A(f"v_lshlrev_b32 v{8 + 2 * i2}, 16, v{16 + i2}")
    A(f"v_and_b32 v{9 + 2 * i2}, 0xffff0000, v{16 + i2}")
for i2 in range(8):
    A(f"v_mul_f32 v{8 + i2}, s73, v{8 + i2}")
for i2 in range(4):
    A(f"v_cvt_pk_bf16_f32 v{16 + i2}, v{8 + 2 * i2}, v{9 + 2 * i2}")
for i2 in range(4):
    A(f"v_lshlrev_b32 v{8 + 2 * i2}, 16, v{16 + i2}")
    A(f"v_and_b32 v{9 + 2 * i2}, 0xffff0000, v{16 + i2}")
A("""
v_max3_f32 v22, v8, v9, v10
v_max3_f32 v23, v11, v12, v13
v_max3_f32 v22, v22, v14, v15
v_max_f32 v22, v22, v23
""")
allreduce_x16(22, 23, "v_max_f32")
allreduce_x32(22, 23, "v_max_f32")
A(f"""
s_mov_b64 exec, 15
ds_write_b32 v25, v22
s_mov_b64 exec, -1
s_waitcnt lgkmcnt(0)
s_barrier
ds_read_b128 v[96:99], v24
ds_read_b128 v[100:103], v24 offset:16
s_waitcnt lgkmcnt(0)
v_max3_f32 v22, v96, v97, v98
v_max3_f32 v23, v99, v100, v101
v_max3_f32 v22, v22, v102, v103
v_max_f32 v22, v22, v23
""")
for i2 in range(8):
    A(f"v_sub_f32 v{8 + i2}, v{8 + i2}, v22")
for i2 in range(8):
    A(f"v_mul_f32 v{8 + i2}, s{sL2E}, v{8 + i2}")
for i2 in range(8):
    A(f"v_exp_f32 v{8 + i2}, v{8 + i2}")
for i2 in range(4):
    A(f"v_cvt_pk_bf16_f32 v{16 + i2}, v{8 + 2 * i2}, v{9 + 2 * i2}")
A("""
v_pk_add_f32 v[8:9], v[8:9], v[10:11]
v_pk_add_f32 v[12:13], v[12:13], v[14:15]
v_pk_add_f32 v[8:9], v[8:9], v[12:13]
v_add_f32 v23, v8, v9
""")
allreduce_x16(23, 26, "v_add_f32")
allreduce_x32(23, 26, "v_add_f32")
A(f"""
s_mov_b64 exec, 15
ds_write_b32 v25, v23 offset:128
s_mov_b64 exec, -1
s_lshl_b32 s73, s71, 3
s_add_u32 s73, s73, s66
s_lshl_b32 s74, s73, 7
s_add_u32 s74, s74, {ML_OFF}
s_lshl_b32 s73, s73, 11
s_add_u32 s73, s73, {P_OFF}
s_waitcnt lgkmcnt(0)
s_barrier
""")
stamp(3)
def ml_publish():
    A(f"""
    s_cmp_lg_u32 s{sWV}, 0
    s_cbranch_scc1 L_noml
    ds_read_b128 v[96:99], v24 offset:128
    ds_read_b128 v[100:103], v24 offset:144
    v_lshlrev_b32 v26, 4, v0
    v_mov_b32 v10, s{sT0}
    v_mov_b32 v11, s{sT0}
    v_mov_b32 v8, v22
    s_waitcnt lgkmcnt(0)
    v_pk_add_f32 v[96:97], v[96:97], v[98:99]
    v_pk_add_f32 v[100:101], v[100:101], v[102:103]
    v_pk_add_f32 v[96:97], v[96:97], v[100:101]
    v_add_f32 v9, v96, v97
    s_mov_b64 exec, 15
    buffer_store_dwordx4 v[8:11], v26, {srd(SRD_WS)}, s74 offen sc1
    s_mov_b64 exec, -1
    """)
    A.label("L_noml")


for half in range(2):
    A(f"s_waitcnt vmcnt({4 - 4 * half})")
    for kq in range(4 * half, 4 * half + 4):
        A(f"ds_read_b64_tr_b16 {vr(vVT + kq * 4, 2)}, v4 offset:{kq * 1024}")
        A(f"ds_read_b64_tr_b16 {vr(vVT + kq * 4 + 2, 2)}, v3 offset:{kq * 1024}")
    if half == 1:
        stamp(4)
        ml_publish()
    A("s_waitcnt lgkmcnt(0)")
    t = half
    for gp in range(2):
        for g2 in range(2):
            for hd in range(2):
                gq = gp * 2 + g2
                acc = vr(vK + (hd * 2 + g2) * 4, 4)
                first = (half == 0 and gp == 0)
                A(f"v_mfma_f32_4x4x4_16b_bf16 {acc}, {vr(16 + 2 * t, 2)}, {vr(vVT + (t * 4 + gq) * 4 + hd * 2, 2)}, {'0' if first else acc} cbsz:4 abid:{4 * gq}")
A(f"""
v_lshlrev_b32 v25, 2, v0
v_add_u32 v25, s69, v25
s_lshl_b32 s75, s{sWV}, 10
v_lshlrev_b32 v3, 4, v0
v_add_u32 v3, s75, v3
v_pk_add_f32 {vr(vK, 2)}, {vr(vK, 2)}, {vr(vK + 4, 2)}
v_pk_add_f32 {vr(vK + 2, 2)}, {vr(vK + 2, 2)}, {vr(vK + 6, 2)}
v_pk_add_f32 {vr(vK + 8, 2)}, {vr(vK + 8, 2)}, {vr(vK + 12, 2)}
v_pk_add_f32 {vr(vK + 10, 2)}, {vr(vK + 10, 2)}, {vr(vK + 14, 2)}
""")
for r in range(4):
    A(f"ds_write2st64_b32 v25, v{vK + r}, v{vK + 8 + r} offset0:{2 * r} offset1:{2 * r + 1}")
A(f"""
s_waitcnt lgkmcnt(0)
s_barrier
s_cmp_ge_u32 s{sWV}, 2
s_cbranch_scc1 L_att_done
""")
for i2 in range(8):
    A(f"ds_read_b128 {vr(32 + 4 * i2, 4)}, v3 offset:{i2 * 8192}")
A("s_waitcnt lgkmcnt(0)")
for st in (16, 8, 4):
    for j2 in range(0, st, 2):
        A(f"v_pk_add_f32 {vr(32 + j2, 2)}, {vr(32 + j2, 2)}, {vr(32 + j2 + st, 2)}")
tagpack24(32, 20)
A(f"buffer_store_dwordx4 v[32:35], v3, {srd(SRD_WS)}, s73 offen sc1")
A.label("L_att_done")
stamp(5)
stamp_flush(6, [(2, 2), (3, 3), (4, 5)])
A("s_endpgm")

A.label("L_gemv")
vWA, vWB = 64, 96
vAC = 44
vXN = 60
vMSK = 41
vPIV = 42
vB, vG4, vC16, vQ2 = 4, 5, 6, 7
vTR, vDM = 62, 63
mk_srd(SRD_X, 4, 2048)
mk_srd(SRD_A, 10, 512 * 4096 * 2)
mk_srd(SRD_B, 12, 4096 * 512 * 2)
mk_srd(SRD_W1, 16, 512 * 1792 * 2)
mk_srd(SRD_W2, 18, 1792 * 512 * 2)
mk_srd(SRD_OUT, 20, 2048)
A(f"""
s_and_b32 s64, s{sSLOT}, 1
s_lshr_b32 s65, s{sSLOT}, 1
v_and_b32 v{vB}, 1, v0
v_lshrrev_b32 v{vG4}, 4, v0
v_lshrrev_b32 v{vC16}, 2, v0
v_bfe_u32 v{vQ2}, v0, 1, 1
v_lshlrev_b32 v1, 10, v{vB}
v_lshrrev_b32 v2, 1, v0
v_lshl_add_u32 v2, v2, 5, v1
v_lshl_add_u32 v3, v{vC16}, 3, v1
s_lshl_b32 s66, s64, 9
s_lshl_b32 s67, s{sWV}, 6
s_add_u32 s66, s66, s67
buffer_load_dwordx4 v[8:11], v2, {srd(SRD_X)}, 0 offen
buffer_load_dwordx4 v[12:15], v2, {srd(SRD_X)}, 0 offen offset:16
buffer_load_dword v{vPIV}, v1, {srd(SRD_X)}, 0 offen
buffer_load_dwordx2 v[16:17], v3, {srd(SRD_X)}, s66 offen
""")
A(f"""
v_and_b32 v{vDM}, 7, v0
v_and_b32 v18, 1, v{vG4}
v_lshlrev_b32 v18, 2, v18
v_xor_b32 v{vDM}, v{vDM}, v18
v_lshlrev_b32 v{vDM}, 4, v{vDM}
v_lshrrev_b32 v40, 3, v0
v_lshl_add_u32 v18, v40, 13, v{vDM}
s_lshl_b32 s68, s64, 21
s_lshl_b32 s69, s{sWV}, 18
s_add_u32 s68, s68, s69
s_lshl_b32 s69, s{sG}, 10
s_add_u32 s68, s68, s69
s_lshl_b32 s69, s65, 7
s_add_u32 s68, s68, s69
s_lshl_b32 s70, s{sWV}, 13
s_add_u32 s70, s70, {L_STG}
""")
for i in range(4):
    A(f"""
    s_add_u32 s71, s70, {i * 1024}
    s_mov_b32 m0, s71
    s_add_u32 s72, s68, {i * 8 * 8192}
    buffer_load_dwordx4 v18, {srd(SRD_A)}, s72 offen nt lds
    """)
A(f"""
v_and_b32 v19, 3, v{vC16}
v_lshrrev_b32 v20, 1, v19
v_lshrrev_b32 v21, 1, v{vG4}
v_xor_b32 v20, v20, v21
v_lshlrev_b32 v{vTR}, 7, v19
v_lshl_add_u32 v{vTR}, v20, 6, v{vTR}
v_and_b32 v21, 1, v{vG4}
v_lshl_add_u32 v{vTR}, v21, 5, v{vTR}
v_and_b32 v21, 3, v0
v_lshl_add_u32 v{vTR}, v21, 3, v{vTR}
v_add_u32 v{vTR}, s70, v{vTR}
v_mov_b32 v{vMSK}, 0xff
s_lshl_b32 s73, s{sWV}, 9
v_lshlrev_b32 v43, 2, v0
v_add_u32 v43, s73, v43
s_waitcnt vmcnt(4)
""")
stamp(1)
A(f"""
v_lshlrev_b32 v20, 16, v16
v_and_b32 v21, 0xffff0000, v16
v_lshlrev_b32 v22, 16, v17
v_and_b32 v23, 0xffff0000, v17
""")
layernorm(8, vPIV, 20, vXN, 96)
A("s_waitcnt vmcnt(0) lgkmcnt(0)")
mk_tags()
stamp(2)


def tr_reads(dst, n):
    for kq in range(n):
        A(f"ds_read_b64_tr_b16 {vr(dst + 2 * kq, 2)}, v{vTR} offset:{kq * 512}")


def gemv(w, n):
    for kq in range(n):
        acc = vr(vAC + 4 * (kq & 3), 4)
        A(f"v_mfma_f32_4x4x4_16b_bf16 {acc}, {vr(vXN, 2)}, {vr(w + 2 * kq, 2)}, {'0' if kq < 4 else acc} cbsz:4 abid:{kq}")
    A(f"""
    v_pk_add_f32 {vr(vAC, 2)}, {vr(vAC, 2)}, {vr(vAC + 4, 2)}
    v_pk_add_f32 {vr(vAC + 8, 2)}, {vr(vAC + 8, 2)}, {vr(vAC + 12, 2)}
    v_pk_add_f32 {vr(vAC, 2)}, {vr(vAC, 2)}, {vr(vAC + 8, 2)}
    """)


def red_sum(addr, lbase):
    for i in range(8):
        A(f"ds_read_b128 {vr(8 + 4 * i, 4)}, v{addr} offset:{lbase + i * 512}")
    A("s_waitcnt lgkmcnt(0)")
    for st in (16, 8, 4):
        for j in range(0, st, 2):
            A(f"v_pk_add_f32 {vr(8 + j, 2)}, {vr(8 + j, 2)}, {vr(8 + j + st, 2)}")


tr_reads(vWA, 8)
A("s_waitcnt lgkmcnt(0)")
gemv(vWA, 8)
A(f"""
ds_write2st64_b32 v43, v{vAC}, v{vAC + 1} offset0:{L_RED // 256} offset1:{L_RED // 256 + 1}
s_waitcnt lgkmcnt(0)
s_barrier
v_and_b32 v1, 31, v0
v_lshlrev_b32 v1, 4, v1
s_cmp_lg_u32 s{sWV}, 0
s_cbranch_scc1 L_q_pub_done
""")
red_sum(1, L_RED)
A(f"""
s_lshl_b32 s71, s{sG}, 14
s_lshl_b32 s72, s64, 12
s_add_u32 s71, s71, s72
s_lshl_b32 s72, s65, 9
s_add_u32 s71, s71, s72
s_add_u32 s71, s71, {Q_OFF}
v_and_b32 v20, 15, v0
v_lshlrev_b32 v20, 5, v20
v_lshl_add_u32 v20, v{vG4}, 13, v20
v_mov_b32 v12, v8
v_mov_b32 v13, s{sT0}
v_mov_b32 v14, v9
v_mov_b32 v15, s{sT0}
v_mov_b32 v16, v10
v_mov_b32 v17, s{sT0}
v_mov_b32 v18, v11
v_mov_b32 v19, s{sT0}
s_mov_b32 exec_hi, 0
buffer_store_dwordx4 v[12:15], v20, {srd(SRD_WS)}, s71 offen sc1
buffer_store_dwordx4 v[16:19], v20, {srd(SRD_WS)}, s71 offen offset:16 sc1
s_mov_b64 exec, -1
""")
A.label("L_q_pub_done")
stamp(3)
A(f"""
s_cmp_ge_u32 s{sSLOT}, 8
s_cbranch_scc1 L_ffn_role
""")
A(f"""
v_lshl_add_u32 v18, v40, 10, v{vDM}
s_lshl_b32 s68, s{sG}, 19
s_lshl_b32 s69, s{sWV}, 16
s_add_u32 s68, s68, s69
s_lshl_b32 s69, s{sSLOT}, 7
s_add_u32 s68, s68, s69
""")
for i in range(8):
    A(f"""
    s_add_u32 s71, s70, {i * 1024}
    s_mov_b32 m0, s71
    s_add_u32 s72, s68, {i * 8 * 1024}
    buffer_load_dwordx4 v18, {srd(SRD_B)}, s72 offen nt lds
    """)
A(f"""
v_and_b32 v2, 15, v0
v_lshlrev_b32 v2, 4, v2
v_lshl_add_u32 v2, v{vG4}, 13, v2
s_lshl_b32 s4, s{sG}, 15
s_lshl_b32 s71, s{sWV}, 8
s_add_u32 s4, s4, s71
s_add_u32 s4, s4, {P_OFF}
s_add_u32 s5, s4, 4096
v_lshlrev_b32 v3, 9, v{vG4}
v_lshlrev_b32 v42, 7, v{vB}
v_lshl_add_u32 v42, v{vC16}, 2, v42
s_lshl_b32 s6, s{sG}, 11
s_lshr_b32 s73, s{sWV}, 1
s_lshl_b32 s73, s73, 4
s_add_u32 s6, s6, s73
s_add_u32 s6, s6, {ML_OFF}
""")
if WARM:
    for i in range(4):
        A(f"buffer_load_dwordx4 {vr(8 + 4 * i, 4)}, v2, {srd(SRD_WS)}, s{4 + (i >> 1)} offen offset:{2048 * (i & 1)} sc1")
    A("s_waitcnt vmcnt(4)")
else:
    A("s_waitcnt vmcnt(0)")
tr_reads(vWA, 16)
A("s_waitcnt lgkmcnt(0)")
stamp(4)
A.label("L_p_pre")
for i2 in range(4):
    A(f"buffer_load_dwordx4 {vr(24 + 4 * i2, 4)}, v3, {srd(SRD_WS)}, s6 offen offset:{128 * i2} sc1")
A("s_waitcnt vmcnt(0)")
for i2 in range(4):
    if i2 == 0:
        A(f"v_xor_b32 v40, s{sT0}, v26")
    else:
        A(f"v_bitop3_b32 v40, v{26 + 4 * i2}, s{sT0}, v40 bitop3:0xbe")
poll_tail("L_p_pre", 40, False, sleep=2)
stamp(7)
A("""
v_max3_f32 v40, v24, v28, v32
v_max_f32 v40, v40, v36
""")
allreduce_x16(40, 48, "v_max_f32")
for i2 in range(4):
    A(f"v_sub_f32 v{24 + 4 * i2}, v{24 + 4 * i2}, v40")
for i2 in range(4):
    A(f"v_mul_f32 v{24 + 4 * i2}, s{sL2E}, v{24 + 4 * i2}")
for i2 in range(4):
    A(f"v_exp_f32 v{24 + 4 * i2}, v{24 + 4 * i2}")
A("v_mul_f32 v40, v24, v25")
for i2 in range(1, 4):
    A(f"v_fmac_f32 v40, v{24 + 4 * i2}, v{25 + 4 * i2}")
allreduce_x16(40, 48, "v_add_f32")
A(f"""
v_rcp_f32 v50, v40
s_mov_b32 s{sITER}, 0
""")
A.label("L_p_poll")
for i2 in range(4):
    A(f"buffer_load_dwordx4 {vr(8 + 4 * i2, 4)}, v2, {srd(SRD_WS)}, s{4 + (i2 >> 1)} offen offset:{2048 * (i2 & 1)} sc1")
A("s_waitcnt vmcnt(0)")
tagcheck24(40, [8, 12, 16, 20])
poll_tail("L_p_poll", 40, True, sleep=PSLEEP)
stamp(5)
A("""
v_pk_mul_f32 v[44:45], v[8:9], v[24:25] op_sel_hi:[1,0]
v_pk_mul_f32 v[46:47], v[10:11], v[24:25] op_sel_hi:[1,0]
""")
for i2 in range(1, 4):
    A(f"v_pk_fma_f32 v[44:45], {vr(8 + 4 * i2, 2)}, {vr(24 + 4 * i2, 2)}, v[44:45] op_sel_hi:[1,0,1]")
    A(f"v_pk_fma_f32 v[46:47], {vr(10 + 4 * i2, 2)}, {vr(24 + 4 * i2, 2)}, v[46:47] op_sel_hi:[1,0,1]")
A(f"""
v_permlane16_swap_b32 v44, v46
v_permlane16_swap_b32 v45, v47
v_pk_add_f32 v[44:45], v[44:45], v[46:47]
v_pk_mul_f32 v[44:45], v[44:45], v[50:51] op_sel_hi:[1,0]
v_cvt_pk_bf16_f32 v44, v44, v45
ds_bpermute_b32 v{vXN}, v42, v44
ds_bpermute_b32 v{vXN + 1}, v42, v44 offset:64
s_waitcnt lgkmcnt(0)
""")
gemv(vWA, 16)
A(f"""
ds_write2st64_b32 v43, v{vAC}, v{vAC + 1} offset0:{L_RED2 // 256} offset1:{L_RED2 // 256 + 1}
s_waitcnt lgkmcnt(0)
s_barrier
s_cmp_lg_u32 s{sWV}, 0
s_cbranch_scc1 L_o_done
""")
red_sum(1, L_RED2)
A(f"""
s_lshl_b32 s71, s{sG}, 12
s_lshl_b32 s72, s{sSLOT}, 8
s_add_u32 s71, s71, s72
s_add_u32 s71, s71, {A_OFF}
v_and_b32 v12, 15, v0
v_lshlrev_b32 v12, 4, v12
v_lshl_add_u32 v12, v{vG4}, 11, v12
""")
tagpack24(8, vMSK)
A(f"""
s_mov_b32 exec_hi, 0
buffer_store_dwordx4 v[8:11], v12, {srd(SRD_WS)}, s71 offen sc1
s_mov_b64 exec, -1
""")
A.label("L_o_done")
stamp(6)
stamp_flush(8, [])
A("s_endpgm")

A.label("L_ffn_role")
A(f"""
s_sub_u32 s64, s2, 64
s_cmp_ge_u32 s64, 28
s_cbranch_scc1 L_g_done
s_movk_i32 s65, 3584
v_mul_lo_u32 v18, v40, s65
v_add_u32 v18, v18, v{vDM}
s_mul_i32 s68, s{sWV}, {64 * 3584}
s_lshl_b32 s69, s64, 7
s_add_u32 s68, s68, s69
""")
for i in range(8):
    A(f"""
    s_add_u32 s71, s70, {i * 1024}
    s_mov_b32 m0, s71
    s_add_u32 s72, s68, {i * 8 * 3584}
    buffer_load_dwordx4 v18, {srd(SRD_W1)}, s72 offen nt lds
    """)
A(f"""
v_lshl_add_u32 v19, v40, 10, v{vDM}
s_lshl_b32 s68, s64, 16
s_lshl_b32 s69, s{sWV}, 7
s_add_u32 s68, s68, s69
""")
for i in range(8):
    A(f"""
    s_add_u32 s72, s68, {i * 8 * 1024}
    buffer_load_dwordx4 {vr(vWB + 4 * i, 4)}, v19, {srd(SRD_W2)}, s72 offen nt
    """)
A(f"""
v_add_u32 v3, s69, v3
v_and_b32 v20, 15, v0
v_and_b32 v21, 1, v{vG4}
v_lshrrev_b32 v22, 1, v{vG4}
v_lshlrev_b32 v39, 10, v22
v_lshl_add_u32 v39, v20, 3, v39
v_lshl_add_u32 v39, v21, 2, v39
v_add_u32 v39, s69, v39
buffer_load_dword v38, v39, {srd(SRD_X)}, 0 offen
v_lshlrev_b32 v36, 14, v21
v_lshl_add_u32 v36, v22, 11, v36
v_lshl_add_u32 v36, v20, 4, v36
s_lshl_b32 s8, s{sWV}, 8
s_add_u32 s8, s8, {A_OFF}
s_add_u32 s9, s8, 4096
s_add_u32 s10, s8, 8192
s_add_u32 s11, s8, 12288
v_lshlrev_b32 v37, 4, v0
v_add_u32 v37, s70, v37
""")
if WARM:
    for i in range(4):
        A(f"buffer_load_dwordx4 {vr(8 + 4 * i, 4)}, v36, {srd(SRD_WS)}, s{8 + i} offen sc1")
    A(f"""
    s_and_b32 s71, s64, 15
    s_lshl_b32 s71, s71, 3
    s_add_u32 s71, s71, s{sWV}
    s_lshl_b32 s72, s71, 5
    s_add_u32 s72, s72, {F_OFF}
    v_lshrrev_b32 v28, 1, v0
    v_min_u32 v28, 27, v28
    v_lshlrev_b32 v28, 12, v28
    v_lshl_add_u32 v28, v{vB}, 4, v28
    buffer_load_dwordx4 v[24:27], v28, {srd(SRD_WS)}, s72 offen sc1
    s_waitcnt vmcnt(14)
    """)
else:
    A("s_waitcnt vmcnt(9)")
tr_reads(vWA, 16)
A(f"s_waitcnt vmcnt({5 if WARM else 0}) lgkmcnt(0)")
for i in range(8):
    A(f"ds_write_b128 v37, {vr(vWB + 4 * i, 4)} offset:{i * 1024}")
A("s_waitcnt lgkmcnt(0)")
tr_reads(vWB, 16)
A(f"""
v_lshlrev_b32 v1, 10, v{vB}
s_waitcnt lgkmcnt(0)
""")
stamp(4)
A.label("L_a_pre")
A(f"""
buffer_load_dwordx4 v[8:11], v36, {srd(SRD_WS)}, s8 offen sc1
s_waitcnt vmcnt(0)
""")
tagcheck24(40, [8])
A(f"""
v_and_b32 v40, 0xff, v40
v_cmp_eq_u32 vcc, 0, v40
s_cmp_lg_u64 vcc, 0
s_cbranch_scc1 L_a_poll
s_sleep 2
s_add_u32 s{sITER}, s{sITER}, 1
s_cmp_lt_u32 s{sITER}, {POLL_LIMIT}
s_cbranch_scc1 L_a_pre
""")
A.label("L_a_poll")
for i in range(4):
    A(f"buffer_load_dwordx4 {vr(8 + 4 * i, 4)}, v36, {srd(SRD_WS)}, s{8 + i} offen sc1")
A("s_waitcnt vmcnt(0)")
tagcheck24(40, [8, 12, 16, 20])
poll_tail("L_a_poll", 40, True)
stamp(5)
A(f"""
v_pk_add_f32 v[8:9], v[8:9], v[12:13]
v_pk_add_f32 v[10:11], v[10:11], v[14:15]
v_pk_add_f32 v[16:17], v[16:17], v[20:21]
v_pk_add_f32 v[18:19], v[18:19], v[22:23]
v_pk_add_f32 v[8:9], v[8:9], v[16:17]
v_pk_add_f32 v[10:11], v[10:11], v[18:19]
v_lshlrev_b32 v12, 16, v38
v_and_b32 v13, 0xffff0000, v38
v_permlane16_swap_b32 v8, v10
v_permlane16_swap_b32 v9, v11
v_pk_add_f32 v[8:9], v[8:9], v[10:11]
v_cvt_pk_bf16_f32 v16, v8, v9
v_lshlrev_b32 v8, 16, v16
v_and_b32 v9, 0xffff0000, v16
v_pk_add_f32 v[8:9], v[8:9], v[12:13]
v_cvt_pk_bf16_f32 v16, v8, v9
ds_write_b32 v39, v16 offset:{L_H}
v_lshlrev_b32 v40, 8, v{vB}
v_lshl_add_u32 v40, v{vC16}, 4, v40
s_waitcnt lgkmcnt(0)
s_barrier
ds_read_b128 v[8:11], v2 offset:{L_H}
ds_read_b128 v[12:15], v2 offset:{L_H + 16}
ds_read_b32 v{vPIV}, v1 offset:{L_H}
ds_read_b64 v[38:39], v3 offset:{L_H}
s_waitcnt lgkmcnt(0)
v_lshlrev_b32 v56, 16, v38
v_and_b32 v57, 0xffff0000, v38
v_lshlrev_b32 v58, 16, v39
v_and_b32 v59, 0xffff0000, v39
""")
stamp(6)
layernorm(8, vPIV, 56, vXN, 16)
gemv(vWA, 16)
A(f"""
ds_write2st64_b32 v43, v{vAC}, v{vAC + 1} offset0:{L_RED2 // 256} offset1:{L_RED2 // 256 + 1}
s_waitcnt lgkmcnt(0)
s_barrier
""")
stamp(7)
red_sum(40, L_RED2)
A(f"""
v_cvt_pk_bf16_f32 v12, v8, v9
v_cvt_pk_bf16_f32 v13, v10, v11
v_lshlrev_b32 v8, 16, v12
v_and_b32 v9, 0xffff0000, v12
v_lshlrev_b32 v10, 16, v13
v_and_b32 v11, 0xffff0000, v13
""")
for i in range(4):
    A(f"v_mul_f32 v{12 + i}, s{sL2E}, v{8 + i}")
for i in range(4):
    A(f"v_exp_f32 v{12 + i}, -v{12 + i}")
for i in range(4):
    A(f"v_add_f32 v{12 + i}, 1.0, v{12 + i}")
for i in range(4):
    A(f"v_rcp_f32 v{12 + i}, v{12 + i}")
A(f"""
v_pk_mul_f32 v[8:9], v[8:9], v[12:13]
v_pk_mul_f32 v[10:11], v[10:11], v[14:15]
v_cvt_pk_bf16_f32 v{vXN}, v8, v9
v_cvt_pk_bf16_f32 v{vXN + 1}, v10, v11
""")
gemv(vWB, 16)
A(f"""
v_lshlrev_b32 v12, 3, v0
s_lshl_b32 s71, s64, 12
s_lshl_b32 s72, s{sWV}, 9
s_add_u32 s71, s71, s72
s_add_u32 s71, s71, {F_OFF}
v_mov_b32_dpp v{vAC + 2}, v{vAC} quad_perm:[1,1,3,3] row_mask:0xf bank_mask:0xf
v_mov_b32_dpp v{vAC + 3}, v{vAC + 1} quad_perm:[1,1,3,3] row_mask:0xf bank_mask:0xf
""")
tagpack24(vAC, vMSK)
exec_mask(0x55555555)
A(f"""
buffer_store_dwordx4 {vr(vAC, 4)}, v12, {srd(SRD_WS)}, s71 offen sc1
s_mov_b64 exec, -1
""")
stamp(8)
A(f"""
s_cmp_ge_u32 s64, 16
s_cbranch_scc1 L_g_done
s_lshl_b32 s71, s64, 3
s_add_u32 s71, s71, s{sWV}
s_lshl_b32 s72, s71, 5
s_add_u32 s72, s72, {F_OFF}
v_lshrrev_b32 v12, 1, v0
v_min_u32 v13, 27, v12
v_lshlrev_b32 v13, 12, v13
v_lshl_add_u32 v13, v{vB}, 4, v13
v_cmp_gt_u32 s[12:13], 28, v12
v_lshrrev_b32 v14, 1, v{vG4}
v_lshlrev_b32 v14, 10, v14
v_and_b32 v15, 1, v{vG4}
v_lshl_add_u32 v14, v15, 1, v14
v_lshl_add_u32 v14, v{vB}, 2, v14
s_lshl_b32 s73, s71, 3
v_add_u32 v14, s73, v14
s_mov_b32 s{sITER}, 0
ds_read_u16 v15, v14 offset:{L_H}
""")
A.label("L_f_poll")
A(f"""
buffer_load_dwordx4 v[8:11], v13, {srd(SRD_WS)}, s72 offen sc1
s_waitcnt vmcnt(0)
""")
tagcheck24(40, [8])
poll_tail("L_f_poll", 40, True)
stamp(9)
for j in range(4):
    A(f"v_cndmask_b32 v{8 + j}, 0, v{8 + j}, s[12:13]")
A(f"""
v_permlane32_swap_b32 v8, v9
v_permlane32_swap_b32 v10, v11
v_add_f32 v8, v8, v9
v_add_f32 v10, v10, v11
v_permlane16_swap_b32 v8, v10
v_add_f32 v8, v8, v10
""")
for r in (2, 4, 8):
    A(f"v_add_f32_dpp v8, v8, v8 row_ror:{r} row_mask:0xf bank_mask:0xf")
bf16r(8, 8)
A(f"""
s_waitcnt lgkmcnt(0)
v_lshlrev_b32 v15, 16, v15
v_add_f32 v8, v8, v15
v_cvt_pk_bf16_f32 v8, v8, v8
""")
exec_mask(0x00030003)
A(f"""
buffer_store_short v8, v14, {srd(SRD_OUT)}, 0 offen
s_cmp_lg_u32 s71, 0
s_cbranch_scc1 L_no_epoch
s_mov_b64 exec, 1
v_mov_b32 v9, 0
v_mov_b32 v10, s{sT0}
buffer_store_dword v10, v9, {srd(SRD_WS)}, 0 offen
""")
A.label("L_no_epoch")
A("s_mov_b64 exec, -1")
if DBG:
    stamp(10)
    stamp_flush(11, [(9, 4), (10, 5), (11, 8), (12, 9), (13, 10)])
A.label("L_g_done")
if not DBG:
    stamp(10)
    stamp_flush(11)
A.label("L_end")
A("s_endpgm")

hdr = open("cdna_kernels/%s.s.ref" % NAME).read().split("; Override")[0]
src = hdr + f"""; @launch grid=(256,1,1) block=(512,1,1) lds={LDS_SIZE}
.amdgcn_target "amdgcn-amd-amdhsa--gfx950"
.text
.globl {NAME}_kernel
.p2align 8
.type {NAME}_kernel,@function
""" + A.text() + f""".section .rodata,"a"
.p2align 6
.amdhsa_kernel {NAME}_kernel
  .amdhsa_next_free_vgpr 128
  .amdhsa_next_free_sgpr 102
  .amdhsa_accum_offset 128
  .amdhsa_group_segment_fixed_size 0
  .amdhsa_kernarg_size 88
  .amdhsa_user_sgpr_count 2
  .amdhsa_user_sgpr_kernarg_segment_ptr 1
  .amdhsa_system_sgpr_workgroup_id_x 1
.end_amdhsa_kernel
"""
open(OUT, "w").write(src)
print("wrote", OUT, len(src), "bytes")
```
